```python
import torch

def _softmax(x, axis=-1):
    return torch.softmax(x, dim=axis)
def _gelu(x):
    return torch.nn.functional.gelu(x, approximate="tanh")
def _silu(x):
    return torch.nn.functional.silu(x)
def _sigmoid(x):
    return torch.sigmoid(x)
def _layernorm(x, axis=-1, eps=1e-5):
    m = x.mean(dim=axis, keepdim=True)
    v = x.var(dim=axis, keepdim=True, unbiased=False)
    return (x - m) / torch.sqrt(v + eps)
def _scatter_add(tgt, idx, src, axis=0):
    return tgt.clone().index_add_(axis, idx, src)
def _segment_sum(src, seg, n):
    out = torch.zeros((n,) + src.shape[1:], dtype=src.dtype)
    return out.index_add_(0, seg, src)
def _pad(x, pw):
    flat = tuple(v for pair in reversed(pw) for v in pair)
    return torch.nn.functional.pad(x, flat)

kernel_name = 'concat_heads__mha_block_cached__gqa_block_cached__near_ridge'

def setup_inputs():

    _w = (lambda a: (lambda t: t.to(torch.bfloat16) if t.is_floating_point() else t)(torch.as_tensor(a)))
    def _A_setup():
        B, Sq, D = 16, 144, 576
        H, Sk, Dh = 32, 512, 128
        return {
            "x": _w((lambda *s: torch.randn(*s, dtype=torch.bfloat16) * 0.8)(B, Sq, D)),
            "k_cache": _w((lambda *s: torch.randn(*s, dtype=torch.bfloat16) * 0.8)(B, H, Sk, Dh)),
            "v_cache": _w((lambda *s: torch.randn(*s, dtype=torch.bfloat16) * 0.05)(B, H, Sk, Dh)),
            "wq": _w((lambda *s: torch.randn(*s, dtype=torch.bfloat16) * 0.8)(D, H * Dh) * (D ** -0.5)),
            "wo": _w((lambda *s: torch.randn(*s, dtype=torch.bfloat16) * 0.05)(H * Dh, D) * ((H * Dh) ** -0.5)),
        }
    _A_in = _A_setup()

    def _B_setup():
        B, Sq, D = 16, 144, 576
        Hq, Hkv, Sk, Dh = 32, 32, 512, 128
        assert Hq % Hkv == 0, (Hq, Hkv)
        return {
            "x": _w((lambda *s: torch.randn(*s, dtype=torch.bfloat16) * 0.8)(B, Sq, D)),
            "k_cache": _w((lambda *s: torch.randn(*s, dtype=torch.bfloat16) * 0.8)(B, Hkv, Sk, Dh)),
            "v_cache": _w((lambda *s: torch.randn(*s, dtype=torch.bfloat16) * 0.05)(B, Hkv, Sk, Dh)),
            "wq": _w((lambda *s: torch.randn(*s, dtype=torch.bfloat16) * 0.8)(D, Hq * Dh) * (D ** -0.5)),
            "wo": _w((lambda *s: torch.randn(*s, dtype=torch.bfloat16) * 0.05)(Hq * Dh, D) * ((Hq * Dh) ** -0.5)),
        }
    _B_in = _B_setup()

    return {
        "A_x": _A_in["x"],
        "A_k_cache": _A_in["k_cache"],
        "A_v_cache": _A_in["v_cache"],
        "A_wq": _A_in["wq"],
        "A_wo": _A_in["wo"],
        "B_x": _B_in["x"],
        "B_k_cache": _B_in["k_cache"],
        "B_v_cache": _B_in["v_cache"],
        "B_wq": _B_in["wq"],
        "B_wo": _B_in["wo"],
    }

def reference(A_x, A_k_cache, A_v_cache, A_wq, A_wo, B_x, B_k_cache, B_v_cache, B_wq, B_wo):
    def _A_ref(x, k_cache, v_cache, wq, wo):
        B, Sq, D = x.shape
        H, Dh = 32, 128
        q = (lambda x, *d: x.permute(*d))((x @ wq).reshape(B, Sq, H, Dh), 0, 2, 1, 3)
        scores = torch.einsum("bhqd,bhkd->bhqk", q, k_cache) * (Dh ** -0.5)
        p = _softmax(scores, axis=-1)
        o = torch.einsum("bhqk,bhkd->bhqd", p, v_cache)
        return (lambda x, *d: x.permute(*d))(o, 0, 2, 1, 3).reshape(B, Sq, H * Dh) @ wo

    def _B_ref(x, k_cache, v_cache, wq, wo):
        B, Sq, D = x.shape
        Hq, Dh = 32, 128
        Hkv = k_cache.shape[1]
        rep = Hq // Hkv
        q = (lambda x, *d: x.permute(*d))((x @ wq).reshape(B, Sq, Hq, Dh), 0, 2, 1, 3)
        k = (lambda x, n, axis: torch.repeat_interleave(x, n, dim=axis))(k_cache, rep, axis=1)
        v = (lambda x, n, axis: torch.repeat_interleave(x, n, dim=axis))(v_cache, rep, axis=1)
        scores = torch.einsum("bhqd,bhkd->bhqk", q, k) * (Dh ** -0.5)
        p = _softmax(scores, axis=-1)
        o = torch.einsum("bhqk,bhkd->bhqd", p, v)
        return (lambda x, *d: x.permute(*d))(o, 0, 2, 1, 3).reshape(B, Sq, Hq * Dh) @ wo

    a = _A_ref(A_x, A_k_cache, A_v_cache, A_wq, A_wo)
    b = _B_ref(B_x, B_k_cache, B_v_cache, B_wq, B_wo)
    return torch.concatenate([a, b], axis=-1)
```

```python
import re

TRANS = ("v_exp_f32", "v_log_f32", "v_rcp_f32", "v_rsq_f32", "v_sqrt_f32", "v_sin_f32", "v_cos_f32")


def _regs(tok):
    t = tok.strip()
    t = t.lstrip("-")
    m = re.match(r"^abs\((.*)\)$", t)
    if m:
        t = m.group(1)
    t = t.strip("|")
    m = re.match(r"^([vsa])(\d+)$", t)
    if m:
        return m.group(1), {int(m.group(2))}
    m = re.match(r"^([vsa])\[(\d+):(\d+)\]$", t)
    if m:
        return m.group(1), set(range(int(m.group(2)), int(m.group(3)) + 1))
    if t == "vcc":
        return "s", {"vcc"}
    if t == "exec":
        return "s", {"exec"}
    if t == "m0":
        return "s", {"m0"}
    return None, set()


class Ins:
    __slots__ = ("text", "mn", "vw", "vr", "sw", "sr", "cls", "cregs", "ab", "dreg", "states", "stdata")


class E:
    def __init__(self):
        self.lines = []
        self.hist = []
        self.pos = 0
        self.vm = []
        self.lg = []
        self.n_ins = 0
        self.uid = 0
        self.maxv = 0

    def raw(self, s):
        self.lines.append(s)

    def comment(self, s):
        self.lines.append("    ; " + s)

    def _parse(self, text):
        I = Ins()
        I.text = text
        parts = text.split(None, 1)
        mn = parts[0]
        I.mn = mn
        rest = parts[1] if len(parts) > 1 else ""
        ops = []
        cur = ""
        depth = 0
        for ch in rest:
            if ch in "[(":
                depth += 1
            if ch in "])":
                depth -= 1
            if ch == "," and depth == 0:
                ops.append(cur.strip())
                cur = ""
            else:
                cur += ch
        if cur.strip():
            ops.append(cur.strip())
        mods = ""
        if ops:
            last = ops[-1].split(None, 1)
            if len(last) > 1:
                ops[-1] = last[0]
                mods = last[1]
        I.vw, I.vr, I.sw, I.sr = set(), set(), set(), set()
        I.cregs, I.ab, I.dreg, I.stdata = set(), set(), None, set()
        I.states = 1

        def W(tok):
            k, r = _regs(tok)
            assert k != "a", "agpr not supported"
            if k == "v":
                I.vw |= r
            elif k == "s":
                I.sw |= r

        def R(tok):
            k, r = _regs(tok)
            assert k != "a", "agpr not supported"
            if k == "v":
                I.vr |= r
            elif k == "s":
                I.sr |= r

        if mn.startswith("v_mfma"):
            I.cls = "mfma"
            W(ops[0]); R(ops[1]); R(ops[2]); R(ops[3])
            I.ab = _regs(ops[1])[1] | _regs(ops[2])[1]
            k, r = _regs(ops[3])
            I.cregs = r if k == "v" else set()
            I.dreg = _regs(ops[0])[1]
        elif mn.startswith("v_"):
            I.cls = "trans" if mn.replace("_e32", "").replace("_e64", "") in TRANS else "valu"
            if "permlane" in mn and "swap" in mn:
                I.cls = "perm"
                W(ops[0]); W(ops[1]); R(ops[0]); R(ops[1])
            else:
                W(ops[0])
                for o in ops[1:]:
                    R(o)
                if mn.startswith("v_fmac") or mn.startswith("v_pk_fmac"):
                    R(ops[0])
                if mn.startswith("v_readfirstlane") or mn.startswith("v_readlane"):
                    I.cls = "rdlane"
                if mn.startswith("v_cndmask") and len(ops) == 3:
                    I.sr.add("vcc")
        elif mn.startswith("ds_"):
            I.cls = "ds"
            if mn.startswith("ds_read") or "_rtn" in mn or mn.startswith("ds_bpermute") or mn.startswith("ds_swizzle"):
                W(ops[0])
                for o in ops[1:]:
                    R(o)
            else:
                for o in ops:
                    R(o)
        elif mn.startswith("buffer_"):
            I.cls = "vmem"
            if mn in ("buffer_wbl2", "buffer_inv"):
                pass
            elif mn.startswith("buffer_load") and re.search(r"\blds\b", mods):
                I.cls = "dma"
                for o in ops:
                    R(o)
                I.sr.add("m0")
            elif mn.startswith("buffer_load"):
                W(ops[0])
                for o in ops[1:]:
                    R(o)
            else:
                for o in ops:
                    R(o)
                if mn.endswith("x4") or mn.endswith("x3"):
                    I.stdata = _regs(ops[0])[1]
                if "atomic" in mn and re.search(r"\bsc0\b", mods):
                    W(ops[0])
        elif mn.startswith("s_"):
            I.cls = "salu"
            if mn == "s_nop":
                I.states = int(ops[0]) + 1
            elif mn.startswith("s_cmp") or mn.startswith("s_cbranch") or mn in (
                "s_waitcnt", "s_barrier", "s_setprio", "s_sleep", "s_branch", "s_endpgm", "s_bitcmp1_b32", "s_bitcmp0_b32", "s_setpc_b64"):
                for o in ops:
                    R(o)
            else:
                W(ops[0])
                for o in ops[1:]:
                    R(o)
        else:
            raise ValueError("unknown instr " + text)
        for r in I.vw | I.vr:
            self.maxv = max(self.maxv, r)
        return I

    def _need(self, P, C):
        n = 0
        isv = lambda x: x.cls in ("valu", "trans", "perm", "rdlane")
        if isv(P):
            if C.cls == "mfma" and P.vw & C.vr:
                n = max(n, 2)
            if C.cls == "perm" and P.vw & C.vr:
                n = max(n, 2)
            if C.cls == "rdlane" and P.vw & C.vr:
                n = max(n, 1)
            if P.cls == "trans" and isv(C) and C.cls != "trans" and P.vw & (C.vr | C.vw):
                n = max(n, 1)
            if P.cls == "trans" and C.cls in ("ds", "vmem", "dma") and P.vw & C.vr:
                n = max(n, 1)
            if P.sw:
                if isv(C) and P.sw & C.sr:
                    n = max(n, 4 if C.cls == "rdlane" else 2)
                if C.cls == "mfma" and P.sw & C.sr:
                    n = max(n, 2)
                if C.cls in ("vmem", "dma") and P.sw & C.sr:
                    n = max(n, 5)
                if C.cls == "salu" and P.sw & C.sr:
                    n = max(n, 1)
        if P.cls == "mfma":
            if C.cls == "mfma":
                if P.vw & C.ab:
                    n = max(n, 8)
                if P.vw & C.cregs and C.cregs != P.vw:
                    n = max(n, 6)
            else:
                if P.vw & (C.vr | C.vw):
                    n = max(n, 8)
                if isv(C) and P.cregs & C.vw:
                    n = max(n, 3)
        if P.cls == "salu" and "m0" in P.sw and C.cls == "dma":
            n = max(n, 1)
        if P.stdata and (P.stdata & C.vw):
            n = max(n, 2)
        return n

    def __call__(self, text, tag=None):
        if "\n" in text:
            for l in text.split("\n"):
                if l.strip():
                    self(l.strip(), tag)
            return
        I = self._parse(text)
        need = 0
        for (P, ppos) in self.hist:
            n = self._need(P, I)
            if n:
                have = self.pos - ppos
                need = max(need, n - have)
        if need > 0:
            self._nop(need)
        self.lines.append("    " + text)
        self.n_ins += 1
        self.pos += I.states
        self.hist.append((I, self.pos))
        self.hist = self.hist[-24:]
        if I.cls in ("vmem", "dma") and I.mn not in ("buffer_wbl2", "buffer_inv"):
            self.vm.append(tag)
        elif I.cls == "vmem":
            self.vm.append(tag)
        if I.cls == "ds":
            self.lg.append(tag)

    def _nop(self, n):
        while n > 0:
            k = min(n, 16)
            self.lines.append(f"    s_nop {k-1}")
            self.n_ins += 1
            self.pos += k
            n -= k

    def fence(self):
        need = 0
        for (P, ppos) in self.hist:
            have = self.pos - ppos
            w = 8 if P.cls == "mfma" else (5 if P.sw and P.cls != "salu" else 2)
            need = max(need, w - have)
        if need > 0:
            self._nop(need)
        self.hist = []

    def label(self, name, full_fence=False):
        self.lines.append(f"{name}:")
        if full_fence:
            self._nop(8)
            self.hist = []

    def newlabel(self, base):
        self.uid += 1
        return f"L_{base}_{self.uid}"

    def branch(self, text, fence=True):
        if fence:
            self.fence()
        self(text)

    def wait_vm(self, pred=None, extra=""):
        if pred is None:
            n = 0
        else:
            idx = -1
            for i, t in enumerate(self.vm):
                if pred(t):
                    idx = i
            if idx < 0:
                return
            n = len(self.vm) - idx - 1
        assert n <= 63, n
        self(f"s_waitcnt vmcnt({n})" + extra)
        self.vm = self.vm[len(self.vm) - n:] if n else []

    def wait_lg(self, pred=None):
        if pred is None:
            n = 0
            if not self.lg:
                return
        else:
            idx = -1
            for i, t in enumerate(self.lg):
                if pred(t):
                    idx = i
            if idx < 0:
                return
            n = len(self.lg) - idx - 1
        n = min(n, 15)
        self(f"s_waitcnt lgkmcnt({n})")
        self.lg = self.lg[len(self.lg) - n:] if n else []

    def text(self):
        return "\n".join(self.lines) + "\n"


def vr(a, n=4):
    return f"v[{a}:{a+n-1}]"


def sr(a, n=4):
    return f"s[{a}:{a+n-1}]"
```

```python
import sys, math, struct
from emit import E, vr, sr

NAME = "concat_heads__mha_block_cached__gqa_block_cached__near_ridge"
WS_BYTES = 292618240
QWS = 0
OWS = 1024 * 36864
NS = 6
NSG = 3
GST = 17408
LDS_G = NS * 16384
LDS_FL = LDS_G + NSG * GST
LDS_TOTAL = LDS_FL + 64
assert LDS_TOTAL <= 163840
THR = 16.0


def f32(x):
    return "0x%08x" % struct.unpack("<I", struct.pack("<f", x))[0]


S_X, S_K, S_V, S_WQ, S_WO, S_OUT, S_DBG, S_WS = 32, 36, 40, 44, 48, 52, 56, 60
sWAVE, sW, sPAIR, sB, sJ, sBLK = 64, 65, 66, 67, 68, 69


def prologue(e, endlabel):
    e("s_cmp_ge_u32 s2, 256")
    e(f"s_cbranch_scc1 {endlabel}")
    e("s_load_dwordx16 s[4:19], s[0:1], 0")
    e("s_load_dwordx8 s[20:27], s[0:1], 64")
    e("s_load_dwordx2 s[28:29], s[0:1], 96")
    e("v_lshrrev_b32 v1, 6, v0")
    e(f"v_readfirstlane_b32 s{sWAVE}, v1")
    e("v_and_b32 v0, 63, v0")
    e(f"s_and_b32 s{sW}, s{sWAVE}, 3")
    e("s_and_b32 s3, s2, 7")
    e("s_lshl_b32 s3, s3, 2")
    e(f"s_lshr_b32 s{sPAIR}, s2, 6")
    e(f"s_add_u32 s{sPAIR}, s{sPAIR}, s3")
    e(f"s_lshr_b32 s{sJ}, s2, 3")
    e(f"s_and_b32 s{sJ}, s{sJ}, 7")
    e(f"s_and_b32 s{sB}, s{sPAIR}, 15")
    e(f"s_lshr_b32 s{sBLK}, s{sPAIR}, 4")
    e("s_waitcnt lgkmcnt(0)")
    e(f"s_cmp_eq_u32 s{sBLK}, 0")
    for dst, a, b, nbytes in ((S_X, 4, 14, 16 * 144 * 576 * 2), (S_K, 6, 16, 1 << 26), (S_V, 8, 18, 1 << 26),
                              (S_WQ, 10, 20, 576 * 4096 * 2), (S_WO, 12, 22, 576 * 4096 * 2)):
        e(f"s_cselect_b32 s{dst}, s{a}, s{b}")
        e(f"s_cselect_b32 s{dst+1}, s{a+1}, s{b+1}")
    for dst, src in ((S_OUT, 24), (S_DBG, 26), (S_WS, 28)):
        e(f"s_mov_b32 s{dst}, s{src}")
        e(f"s_mov_b32 s{dst+1}, s{src+1}")
    for dst, nbytes in ((S_X, 16 * 144 * 576 * 2), (S_K, 1 << 26), (S_V, 1 << 26), (S_WQ, 576 * 4096 * 2),
                        (S_WO, 576 * 4096 * 2), (S_OUT, 16 * 144 * 1152 * 2), (S_DBG, 256), (S_WS, WS_BYTES)):
        e(f"s_and_b32 s{dst+1}, s{dst+1}, 0xffff")
        e(f"s_mov_b32 s{dst+2}, {nbytes}")
        e(f"s_mov_b32 s{dst+3}, 0x20000")


def interleave(e, mf, va, lead=0):
    tot = sum(x[1] for x in va)
    n = len(mf)
    done = 0
    vi = 0
    for k, m in enumerate(mf):
        e(m)
        target = tot * (k + 1) / n
        while vi < len(va) and done + va[vi][1] * 0.5 <= target:
            x = va[vi]
            e(x[0], x[2] if len(x) > 2 else None)
            done += x[1]
            vi += 1
    while vi < len(va):
        x = va[vi]
        e(x[0], x[2] if len(x) > 2 else None)
        vi += 1


class A:
    LIN16, KDMA, VDMA, V0B, V1B, KRD, V0, V1, FLW, FLR, EP, FL, MX, T0, T1, T2 = range(1, 17)
    L = 17
    C = 20
    S = 32
    KF = 56
    VF = 72
    Q = 104
    O = 152
    sF, sRD, sWR, sG, sTHR, sFLOOR, cK1, cK2, cV1, cV2, sCNT, sGEN, sQOFF, sOOFF, cQ, sT = range(70, 86)


def a_flags_check(e, spins):
    e.wait_lg(lambda t: t == "fl")
    e(f"v_cmp_gt_u32 vcc, s{A.sF}, v{A.FL}")
    lab = e.newlabel("aspin")
    back = e.newlabel("aspinb")
    e.branch(f"s_cbranch_vccnz {lab}", fence=False)
    e.label(back)
    spins.append((lab, back, A.FL, A.FLR, A.sF, 0))


def emit_spins(e, spins):
    for lab, back, vfl, vaddr, sF, off in spins:
        e.label(lab, full_fence=True)
        e.lg = []
        e("s_sleep 1")
        e("s_sub_u32 s90, s90, 1")
        e("s_cbranch_scc1 L_bail")
        e(f"ds_read_b32 v{vfl}, v{vaddr} offset:{off}")
        e("s_waitcnt lgkmcnt(0)")
        e(f"v_cmp_gt_u32 vcc, s{sF}, v{vfl}")
        e.branch(f"s_cbranch_vccnz {lab}", fence=False)
        e.branch(f"s_branch {back}")


def a_dma(e, kind, tag, spins):
    if kind == "kv":
        e(f"s_add_u32 m0, s{A.sWR}, s{A.cK1}")
        e(f"buffer_load_dwordx4 v{A.KDMA}, {sr(S_K)}, s{A.sG} offen nt lds", tag)
        e(f"s_add_u32 m0, s{A.sWR}, s{A.cK2}")
        e(f"buffer_load_dwordx4 v{A.KDMA}, {sr(S_K)}, s{A.sG} offen offset:64 nt lds", tag)
        e(f"s_add_u32 m0, s{A.sWR}, s{A.cV1}")
        e(f"buffer_load_dwordx4 v{A.VDMA}, {sr(S_V)}, s{A.sG} offen nt lds", tag)
        e(f"s_add_u32 m0, s{A.sWR}, s{A.cV2}")
        e(f"buffer_load_dwordx4 v{A.VDMA}, {sr(S_V)}, s{A.sG} offen offset:64 nt lds", tag)
        e(f"s_add_u32 s{A.sG}, s{A.sG}, 8192")
    elif kind[0] == "q":
        q = kind[1]
        if q == 0:
            e(f"ds_read_b32 v{A.FL}, v{A.FLR} offset:32", "flq")
            e(f"s_add_u32 s{A.sT}, s{A.sGEN}, 2")
            e.wait_lg(lambda t: t == "flq")
            e(f"v_cmp_gt_u32 vcc, s{A.sT}, v{A.FL}")
            lab = e.newlabel("qspin")
            back = e.newlabel("qspinb")
            e.branch(f"s_cbranch_vccnz {lab}", fence=False)
            e.label(back)
            spins.append((lab, back, A.FL, A.FLR, A.sT, 32))
            e(f"s_add_u32 s{A.sQOFF}, s{A.sQOFF}, 36864")
        if q < 2:
            e(f"s_lshl_b32 s{A.sT}, s{sW}, 13")
            e(f"s_add_u32 s{A.sT}, s{A.sT}, s{A.sQOFF}")
            if q == 1:
                e(f"s_add_u32 s{A.sT}, s{A.sT}, 4096")
        else:
            e(f"s_add_u32 s{A.sT}, s{A.sQOFF}, 32768")
        e(f"s_add_u32 m0, s{A.sWR}, s{A.cQ}")
        for s in range(4):
            e(f"buffer_load_dwordx4 v{A.LIN16}, {sr(S_WS)}, s{A.sT} offen offset:{1024*s} lds", tag)
    elif kind == "none":
        return
    e(f"s_add_u32 s{A.sWR}, s{A.sWR}, 16384")
    e(f"s_cmp_eq_u32 s{A.sWR}, {NS*16384}")
    e(f"s_cselect_b32 s{A.sWR}, 0, s{A.sWR}")


def a_top(e):
    e.wait_vm(lambda t: t == 1)
    e.vm = [t - 1 if isinstance(t, int) else t for t in e.vm]
    e(f"s_add_u32 s{A.sF}, s{A.sF}, 1")
    e(f"v_add_u32 v{A.EP}, 1, v{A.EP}")
    e.wait_lg(lambda t: t == "prevslot")
    e(f"ds_write_b32 v{A.FLW}, v{A.EP}", "flw")


def a_advance_rd(e):
    e(f"s_add_u32 s{A.sRD}, s{A.sRD}, 16384")
    e(f"s_cmp_eq_u32 s{A.sRD}, {NS*16384}")
    e(f"s_cselect_b32 s{A.sRD}, 0, s{A.sRD}")


def a_kpre(e):
    e(f"v_add_u32 v{A.KRD}, s{A.sRD}, v{A.LIN16}")
    for i in range(4):
        e(f"ds_read_b128 {vr(A.KF+4*i)}, v{A.KRD} offset:{1024*i}", ("k", i))


def a_kv_step(e, R, dma_kind, next_is_kv, spins, rares):
    a_top(e)
    e(f"v_add_u32 v{A.V0}, s{A.sRD}, v{A.V0B}")
    e(f"v_add_u32 v{A.V1}, s{A.sRD}, v{A.V1B}")
    vreads = []
    for T in range(8):
        for u in range(2):
            vreads.append(f"ds_read_b64_tr_b16 {vr(A.VF+4*T+2*u,2)}, v{A.V1 if T&1 else A.V0} offset:{8192+(T>>1)*2048+u*1024}")
    for idx in range(8):
        u, s = idx >> 2, idx & 3
        e.wait_lg(lambda t: t == ("k", idx))
        for r in range(R):
            d = A.S + 8 * r + 4 * u
            c = vr(A.C + 4 * r) if s == 0 else vr(d)
            e(f"v_mfma_f32_16x16x32_bf16 {vr(d)}, {vr(A.KF+4*(idx&3))}, {vr(A.Q+16*r+4*s)}, {c}")
            if r == R - 1 and idx < 4:
                e(f"ds_read_b128 {vr(A.KF+4*idx)}, v{A.KRD} offset:{1024*(idx+4)}", ("k", idx + 4))
            elif idx >= 4 or r < R - 1:
                n = 2 if (idx >= 4 and R == 2) else 1
                for _ in range(n):
                    if vreads:
                        e(vreads.pop(0), "v")
    while vreads:
        e(vreads.pop(0), "v")
    e(f"ds_read_b32 v{A.FL}, v{A.FLR}", "fl")
    a_advance_rd(e)
    regs = [A.S + i for i in range(8 * R)]
    order = [A.S + 8 * r + i for r in range(R) for i in range(4)] + [A.S + 8 * r + 4 + i for r in range(R) for i in range(4)]
    e(f"v_max3_f32 v{A.MX}, v{order[0]}, v{order[1]}, v{order[2]}")
    k = 3
    while k < len(order):
        if k + 1 < len(order):
            e(f"v_max3_f32 v{A.MX}, v{A.MX}, v{order[k]}, v{order[k+1]}")
            k += 2
        else:
            e(f"v_max_f32 v{A.MX}, v{A.MX}, v{order[k]}")
            k += 1
    e(f"v_cmp_lt_f32 vcc, s{A.sTHR}, v{A.MX}")
    lab = e.newlabel("rare")
    back = e.newlabel("rareb")
    e.branch(f"s_cbranch_vccnz {lab}", fence=False)
    e.label(back)
    rares.append((lab, back, R))

    def softmax(r):
        b = A.S + 8 * r
        out = []
        for i in range(8):
            out.append((f"v_exp_f32 v{b+i}, v{b+i}", 2))
        seq = []
        for i in range(0, 8, 2):
            seq.append((f"v_add_f32 v{A.L+r}, v{A.L+r}, v{b+i}", 1))
            seq.append((f"v_add_f32 v{A.L+r}, v{A.L+r}, v{b+i+1}", 1))
            seq.append((f"v_cvt_pk_bf16_f32 v{b+i//2}, v{b+i}, v{b+i+1}", 1))
        return out + seq

    for x in softmax(0)[:8]:
        e(x[0])
    a_flags_check(e, spins)
    a_dma(e, dma_kind, NS - 2, spins)
    for x in softmax(0)[8:]:
        e(x[0])
    e.wait_lg(lambda t: t == "v")
    if next_is_kv:
        a_kpre(e)
    for r in range(R):
        mf = [f"v_mfma_f32_16x16x32_bf16 {vr(A.O+32*r+4*T)}, {vr(A.VF+4*T)}, {vr(A.S+8*r)}, {vr(A.O+32*r+4*T)}" for T in range(8)]
        va = softmax(r + 1) if r + 1 < R else []
        interleave(e, mf, va)


def a_rare(e, lab, back, R):
    e.label(lab, full_fence=True)
    for r in range(R):
        b = A.S + 8 * r
        e(f"v_max3_f32 v{A.T0}, v{b}, v{b+1}, v{b+2}")
        e(f"v_max3_f32 v{A.T0}, v{A.T0}, v{b+3}, v{b+4}")
        e(f"v_max3_f32 v{A.T0}, v{A.T0}, v{b+5}, v{b+6}")
        e(f"v_max_f32 v{A.T0}, v{A.T0}, v{b+7}")
        e(f"v_mov_b32 v{A.T1}, v{A.T0}")
        e(f"v_permlane32_swap_b32 v{A.T0}, v{A.T1}")
        e(f"v_max_f32 v{A.T0}, v{A.T0}, v{A.T1}")
        e(f"v_mov_b32 v{A.T1}, v{A.T0}")
        e(f"v_permlane16_swap_b32 v{A.T0}, v{A.T1}")
        e(f"v_max_f32 v{A.T0}, v{A.T0}, v{A.T1}")
        e(f"v_max_f32 v{A.T0}, s{A.sFLOOR}, v{A.T0}")
        for i in range(8):
            e(f"v_sub_f32 v{b+i}, v{b+i}, v{A.T0}")
        for i in range(4):
            e(f"v_sub_f32 v{A.C+4*r+i}, v{A.C+4*r+i}, v{A.T0}")
        e(f"v_max_f32 v{A.T1}, 0, v{A.T0}")
        e(f"v_exp_f32 v{A.T1}, -v{A.T1}")
        e(f"v_mul_f32 v{A.L+r}, v{A.L+r}, v{A.T1}")
        for i in range(32):
            e(f"v_mul_f32 v{A.O+32*r+i}, v{A.O+32*r+i}, v{A.T1}")
    e(f"s_mov_b32 s{A.sTHR}, {f32(THR)}")
    e(f"s_mov_b32 s{A.sFLOOR}, 0")
    e.branch(f"s_branch {back}")


def a_reset(e):
    for i in range(96):
        e(f"v_mov_b32 v{A.O+i}, 0")
    for i in range(15):
        e(f"v_mov_b32 v{A.L+i}, 0")
    e(f"s_mov_b32 s{A.sTHR}, 0xff800000")
    e(f"s_mov_b32 s{A.sFLOOR}, 0xff800000")


def a_epilogue(e, R):
    for r in range(R):
        e(f"v_mov_b32 v{A.T1}, v{A.L+r}")
        e(f"v_permlane32_swap_b32 v{A.L+r}, v{A.T1}")
        e(f"v_add_f32 v{A.L+r}, v{A.L+r}, v{A.T1}")
        e(f"v_mov_b32 v{A.T1}, v{A.L+r}")
        e(f"v_permlane16_swap_b32 v{A.L+r}, v{A.T1}")
        e(f"v_add_f32 v{A.L+r}, v{A.L+r}, v{A.T1}")
        e(f"v_rcp_f32 v{A.T0}, v{A.L+r}")
        if r < 2:
            e(f"s_lshl_b32 s{A.sT}, s{sW}, 11")
            e(f"s_add_u32 s{A.sT}, s{A.sT}, s{A.sOOFF}")
            if r == 1:
                e(f"s_add_u32 s{A.sT}, s{A.sT}, 1024")
        else:
            e(f"s_add_u32 s{A.sT}, s{A.sOOFF}, 8192")
        for s in range(4):
            o = A.O + 32 * r + 8 * s
            for i in range(8):
                e(f"v_mul_f32 v{o+i}, v{o+i}, v{A.T0}")
            for i in range(4):
                e(f"v_cvt_pk_bf16_f32 v{o+i}, v{o+2*i}, v{o+2*i+1}")
            e(f"buffer_store_dwordx4 {vr(o)}, v{A.LIN16}, {sr(S_WS)}, s{A.sT} offen", "ost")
            if s < 3:
                e(f"s_add_u32 s{A.sT}, s{A.sT}, 9216")
    e(f"s_add_u32 s{A.sOOFF}, s{A.sOOFF}, 36864")


def a_q_step(e, R, q, spins):
    a_top(e)
    if q < R:
        e(f"v_add_u32 v{A.KRD}, s{A.sRD}, v{A.LIN16}")
        e(f"v_add_u32 v{A.KRD}, s{A.cQ}, v{A.KRD}")
        for s in range(4):
            e(f"ds_read_b128 {vr(A.Q+16*q+4*s)}, v{A.KRD} offset:{1024*s}", "prevslot")
    if q == 0:
        a_reset(e)
    e(f"ds_read_b32 v{A.FL}, v{A.FLR}", "fl")
    a_advance_rd(e)
    a_flags_check(e, spins)
    a_dma(e, "kv", NS - 2, spins)
    if q == 2:
        a_kpre(e)


def steady_vm():
    return [t for t in range(1, NS - 1) for _ in range(4)]


def gen_A(e):
    spins, rares = [], []
    e("s_setprio 2")
    e(f"v_lshlrev_b32 v{A.LIN16}, 4, v0")
    e(f"v_and_b32 v{A.T0}, 15, v0")
    e(f"v_lshrrev_b32 v{A.T1}, 4, v0")
    e(f"v_lshlrev_b32 v{A.KDMA}, 8, v{A.T0}")
    e(f"v_lshl_add_u32 v{A.KDMA}, v{A.T1}, 4, v{A.KDMA}")
    e(f"v_lshrrev_b32 v{A.T0}, 2, v0")
    e(f"v_lshrrev_b32 v{A.T2}, 1, v0")
    e(f"v_xor_b32 v{A.T2}, v{A.T2}, v{A.T1}")
    e(f"v_and_b32 v{A.T2}, 1, v{A.T2}")
    e(f"v_lshlrev_b32 v{A.VDMA}, 8, v{A.T0}")
    e(f"v_lshl_add_u32 v{A.VDMA}, v{A.T2}, 5, v{A.VDMA}")
    e(f"v_and_b32 v{A.T2}, 1, v0")
    e(f"v_lshl_add_u32 v{A.VDMA}, v{A.T2}, 4, v{A.VDMA}")
    e(f"v_lshlrev_b32 v{A.V0B}, 6, v{A.T0}")
    e(f"v_and_b32 v{A.T2}, 3, v0")
    e(f"v_lshl_add_u32 v{A.V0B}, v{A.T2}, 3, v{A.V0B}")
    e(f"v_and_b32 v{A.T2}, 1, v{A.T1}")
    e(f"v_lshl_add_u32 v{A.V0B}, v{A.T2}, 5, v{A.V0B}")
    e(f"v_xor_b32 v{A.V1B}, 32, v{A.V0B}")
    e(f"s_lshl_b32 s{A.sT}, s{sW}, 2")
    e(f"s_add_u32 s{A.sT}, s{A.sT}, {LDS_FL}")
    e(f"v_mov_b32 v{A.FLW}, s{A.sT}")
    e(f"v_and_b32 v{A.T2}, 3, v0")
    e(f"v_lshlrev_b32 v{A.FLR}, 2, v{A.T2}")
    e(f"v_add_u32 v{A.FLR}, {LDS_FL}, v{A.FLR}")
    e(f"v_mov_b32 v{A.EP}, 0")
    e(f"s_mov_b32 s{A.sF}, 0")
    e(f"s_lshl_b32 s{A.cK1}, s{sW}, 11")
    e(f"s_add_u32 s{A.cK2}, s{A.cK1}, {1024-64}")
    e(f"s_and_b32 s{A.sT}, s{sW}, 1")
    e(f"s_lshl_b32 s{A.cV1}, s{A.sT}, 12")
    e(f"s_lshr_b32 s{A.cV2}, s{sW}, 1")
    e(f"s_lshl_b32 s{A.cV2}, s{A.cV2}, 10")
    e(f"s_add_u32 s{A.cV1}, s{A.cV1}, s{A.cV2}")
    e(f"s_add_u32 s{A.cV1}, s{A.cV1}, 8192")
    e(f"s_add_u32 s{A.cV2}, s{A.cV1}, {2048-64}")
    e(f"s_lshl_b32 s{A.cQ}, s{sW}, 12")
    e(f"s_lshl_b32 s{A.sG}, s{sB}, 3")
    e(f"s_add_u32 s{A.sG}, s{A.sG}, s{sJ}")
    e(f"s_lshl_b32 s{A.sG}, s{A.sG}, 19")
    e(f"s_lshl_b32 s{A.sT}, s{A.sT}, 7")
    e(f"s_add_u32 s{A.sG}, s{A.sG}, s{A.sT}")
    e(f"s_lshr_b32 s{A.sT}, s{sW}, 1")
    e(f"s_lshl_b32 s{A.sT}, s{A.sT}, 12")
    e(f"s_add_u32 s{A.sG}, s{A.sG}, s{A.sT}")
    e(f"s_lshl_b32 s{A.sT}, s{sPAIR}, 3")
    e(f"s_add_u32 s{A.sT}, s{A.sT}, s{sJ}")
    e(f"s_mul_i32 s{A.sQOFF}, s{A.sT}, {4*36864}")
    e(f"s_add_u32 s{A.sOOFF}, s{A.sQOFF}, {OWS}")
    e(f"s_mov_b32 s{A.sRD}, 0")
    e(f"s_mov_b32 s{A.sWR}, 0")
    e(f"s_mov_b32 s{A.sGEN}, 0")
    for t in range(NS - 1):
        a_dma(e, "kv", t, spins)
    a_reset(e)
    e(f"s_mov_b32 s{A.sT}, 1")
    lab = e.newlabel("q0spin")
    e.label(lab)
    e("s_sleep 2")
    e("s_sub_u32 s90, s90, 1")
    e("s_cbranch_scc1 L_bail")
    e(f"ds_read_b32 v{A.FL}, v{A.FLR} offset:32")
    e("s_waitcnt lgkmcnt(0)")
    e.lg = []
    e(f"v_cmp_gt_u32 vcc, s{A.sT}, v{A.FL}")
    e.branch(f"s_cbranch_vccnz {lab}", fence=False)
    e(f"s_lshl_b32 s{A.sT}, s{sW}, 13")
    e(f"s_add_u32 s{A.sT}, s{A.sT}, s{A.sQOFF}")
    for s in range(4):
        e(f"buffer_load_dwordx4 {vr(A.Q+4*s)}, v{A.LIN16}, {sr(S_WS)}, s{A.sT} offen offset:{1024*s}", "q")
    e(f"s_add_u32 s{A.sT}, s{A.sT}, 4096")
    for s in range(4):
        e(f"buffer_load_dwordx4 {vr(A.Q+16+4*s)}, v{A.LIN16}, {sr(S_WS)}, s{A.sT} offen offset:{1024*s}", "q")
    e(f"s_add_u32 s{A.sT}, s{A.sQOFF}, 32768")
    for s in range(4):
        e(f"buffer_load_dwordx4 {vr(A.Q+32+4*s)}, v{A.LIN16}, {sr(S_WS)}, s{A.sT} offen offset:{1024*s}", "q")
    e.wait_vm()
    e(f"s_mov_b32 s{A.sF}, 1")
    e(f"v_mov_b32 v{A.EP}, 1")
    e(f"ds_write_b32 v{A.FLW}, v{A.EP}", "flw")
    e(f"ds_read_b32 v{A.FL}, v{A.FLR}", "fl")
    a_flags_check(e, spins)
    a_kpre(e)
    e(f"s_cmp_eq_u32 s{sW}, 0")
    e.branch("s_cbranch_scc1 L_A3_kv")
    e.branch("s_branch L_A2_kv")

    NLOOP = 16 - (NS - 1)
    for R in (2, 3):
        e.label(f"L_A{R}_q")
        e.vm = steady_vm() + ["ost"] * 8
        e.lg = []
        for q in range(3):
            a_q_step(e, R, q, spins)
        e.fence()
        e.label(f"L_A{R}_kv")
        e(f"s_mov_b32 s{A.sCNT}, {NLOOP}")
        e.label(f"L_A{R}_loop")
        e.vm = steady_vm()
        e.lg = [("k", i) for i in range(4)]
        a_kv_step(e, R, "kv", True, spins, rares)
        assert e.vm == steady_vm(), e.vm
        e(f"s_sub_u32 s{A.sCNT}, s{A.sCNT}, 1")
        e(f"s_cmp_lg_u32 s{A.sCNT}, 0")
        e.branch(f"s_cbranch_scc1 L_A{R}_loop")
        e(f"s_cmp_eq_u32 s{A.sGEN}, 3")
        e.branch(f"s_cbranch_scc1 L_A{R}_last")
        save = (list(e.vm), list(e.lg))
        kinds = [("q", 0), ("q", 1), ("q", 2)] + ["kv"] * (NS - 4)
        for i in range(NS - 1):
            a_kv_step(e, R, kinds[i], i < NS - 2, spins, rares)
        a_epilogue(e, R)
        e(f"s_add_u32 s{A.sGEN}, s{A.sGEN}, 1")
        e(f"s_cmp_eq_u32 s{A.sGEN}, s{sW}")
        e.branch("s_cbranch_scc1 L_A3_q")
        e.branch("s_branch L_A2_q")
        e.label(f"L_A{R}_last")
        e.vm, e.lg = save
        for i in range(NS - 1):
            a_kv_step(e, R, "none", i < NS - 2, spins, rares)
        a_epilogue(e, R)
        e("s_waitcnt vmcnt(0)")
        e("s_endpgm")
    emit_spins(e, spins)
    for lab, back, R in rares:
        a_rare(e, lab, back, R)


class G:
    LIN16, XDMA, WDMA, W0, W1, FLW, FLR, EP, FL, QST, T0, T1, T2, FQW = range(1, 15)
    B = 16
    AF = 52
    ACC = 72
    sF, sX, sWq, sTASK, sQOFF, sT, sT2, sSC, sXB = range(70, 79)


def g_dma(e, kk, buf, tag):
    base = LDS_G + buf * GST
    lab = e.newlabel("gx8")
    e(f"s_cmp_eq_u32 s{sW}, {kk % 4}")
    e.branch(f"s_cbranch_scc0 {lab}", fence=False)
    e(f"s_mov_b32 m0, {base + 8*1024}")
    e(f"s_add_u32 s{G.sT}, s{G.sXB}, {8*18432 + kk*64}")
    e(f"buffer_load_dwordx4 v{G.XDMA}, {sr(S_X)}, s{G.sT} offen lds", "extra")
    e.vm.pop()
    e.label(lab)
    e(f"s_lshl_b32 s{G.sT2}, s{sW}, 10")
    e(f"s_add_u32 m0, s{G.sT2}, {base}")
    e(f"s_add_u32 s{G.sT}, s{G.sX}, {kk*64}")
    e(f"buffer_load_dwordx4 v{G.XDMA}, {sr(S_X)}, s{G.sT} offen lds", tag)
    e(f"s_add_u32 m0, s{G.sT2}, {base+4096}")
    e(f"s_add_u32 s{G.sT}, s{G.sX}, {kk*64 + 4*18432}")
    e(f"buffer_load_dwordx4 v{G.XDMA}, {sr(S_X)}, s{G.sT} offen lds", tag)
    e(f"s_lshl_b32 s{G.sT2}, s{sW}, 11")
    for u in range(2):
        e(f"s_add_u32 m0, s{G.sT2}, {base + 9216 + u*1024}")
        e(f"s_add_u32 s{G.sT}, s{G.sWq}, {(kk*32+16*u)*8192}")
        e(f"buffer_load_dwordx4 v{G.WDMA}, {sr(S_WQ)}, s{G.sT} offen lds", tag)


def g_reads_A(kk):
    base = LDS_G + (kk % NSG) * GST + 9216 - LDS_G
    out = []
    for tt in range(2):
        for hh in range(2):
            out.append((f"ds_read_b64_tr_b16 {vr(G.AF + 8*(kk&1) + 4*tt + 2*hh, 2)}, v{G.W1 if tt else G.W0} offset:{base + hh*256}", ("a", kk)))
    return out


def g_read_B(kk, i):
    base = (kk % NSG) * GST
    return (f"ds_read_b128 {vr(G.B+4*i)}, v{G.LIN16} offset:{base + i*1024}", ("b", kk, i))


def g_sync(e, spins):
    e.wait_lg(lambda t: t == "fl")
    e(f"v_cmp_gt_u32 vcc, s{G.sF}, v{G.FL}")
    lab = e.newlabel("gspin")
    back = e.newlabel("gspinb")
    e.branch(f"s_cbranch_vccnz {lab}", fence=False)
    e.label(back)
    spins.append((lab, back, G.FL, G.FLR, G.sF, 0))


def g_arrive(e):
    e(f"s_add_u32 s{G.sF}, s{G.sF}, 1")
    e(f"v_add_u32 v{G.EP}, 1, v{G.EP}")
    e(f"ds_write_b32 v{G.FLW}, v{G.EP}", "flw")


def gen_G(e):
    spins = []
    e(f"v_lshlrev_b32 v{G.LIN16}, 4, v0")
    e(f"v_add_u32 v{G.LIN16}, {LDS_G}, v{G.LIN16}")
    e(f"v_and_b32 v{G.T0}, 15, v0")
    e(f"v_lshrrev_b32 v{G.T1}, 4, v0")
    e(f"v_mul_u32_u24 v{G.XDMA}, 1152, v{G.T0}")
    e(f"v_lshl_add_u32 v{G.XDMA}, v{G.T1}, 4, v{G.XDMA}")
    e(f"v_lshlrev_b32 v{G.QST}, 4, v{G.T0}")
    e(f"v_lshrrev_b32 v{G.T2}, 1, v{G.T1}")
    e(f"v_lshl_add_u32 v{G.QST}, v{G.T2}, 8, v{G.QST}")
    e(f"v_and_b32 v{G.T2}, 1, v{G.T1}")
    e(f"v_lshl_add_u32 v{G.QST}, v{G.T2}, 3, v{G.QST}")
    e(f"v_lshrrev_b32 v{G.T0}, 2, v0")
    e(f"v_lshlrev_b32 v{G.WDMA}, 13, v{G.T0}")
    e(f"v_lshrrev_b32 v{G.T0}, 1, v0")
    e(f"v_lshrrev_b32 v{G.T2}, 5, v0")
    e(f"v_xor_b32 v{G.T0}, v{G.T0}, v{G.T2}")
    e(f"v_and_b32 v{G.T0}, 1, v{G.T0}")
    e(f"v_lshl_add_u32 v{G.WDMA}, v{G.T0}, 5, v{G.WDMA}")
    e(f"v_and_b32 v{G.T0}, 1, v0")
    e(f"v_lshl_add_u32 v{G.WDMA}, v{G.T0}, 4, v{G.WDMA}")
    e(f"v_lshlrev_b32 v{G.W0}, 9, v{G.T1}")
    e(f"v_bfe_u32 v{G.T0}, v0, 2, 2")
    e(f"v_lshl_add_u32 v{G.W0}, v{G.T0}, 6, v{G.W0}")
    e(f"v_and_b32 v{G.T0}, 3, v0")
    e(f"v_lshl_add_u32 v{G.W0}, v{G.T0}, 3, v{G.W0}")
    e(f"v_and_b32 v{G.T0}, 1, v{G.T1}")
    e(f"v_lshl_add_u32 v{G.W0}, v{G.T0}, 5, v{G.W0}")
    e(f"v_xor_b32 v{G.W1}, 32, v{G.W0}")
    e(f"s_lshl_b32 s{G.sT}, s{sW}, 11")
    e(f"s_add_u32 s{G.sT}, s{G.sT}, {LDS_G}")
    e(f"v_add_u32 v{G.W0}, s{G.sT}, v{G.W0}")
    e(f"v_add_u32 v{G.W1}, s{G.sT}, v{G.W1}")
    e(f"s_lshl_b32 s{G.sT}, s{sW}, 2")
    e(f"s_add_u32 s{G.sT}, s{G.sT}, {LDS_FL+16}")
    e(f"v_mov_b32 v{G.FLW}, s{G.sT}")
    e(f"v_add_u32 v{G.FQW}, 16, v{G.FLW}")
    e(f"v_and_b32 v{G.T2}, 3, v0")
    e(f"v_lshlrev_b32 v{G.FLR}, 2, v{G.T2}")
    e(f"v_add_u32 v{G.FLR}, {LDS_FL+16}, v{G.FLR}")
    e(f"v_mov_b32 v{G.EP}, 0")
    e(f"s_mov_b32 s{G.sF}, 0")
    e(f"s_mul_i32 s{G.sXB}, s{sB}, 165888")
    e(f"s_mul_i32 s{G.sX}, s{sW}, 18432")
    e(f"s_add_u32 s{G.sX}, s{G.sX}, s{G.sXB}")
    e(f"s_lshl_b32 s{G.sWq}, s{sJ}, 10")
    e(f"s_lshl_b32 s{G.sT}, s{sW}, 6")
    e(f"s_add_u32 s{G.sWq}, s{G.sWq}, s{G.sT}")
    e(f"s_lshl_b32 s{G.sT}, s{sPAIR}, 3")
    e(f"s_add_u32 s{G.sT}, s{G.sT}, s{sJ}")
    e(f"s_mul_i32 s{G.sQOFF}, s{G.sT}, {4*36864}")
    e(f"s_lshl_b32 s{G.sT}, s{sW}, 10")
    e(f"s_add_u32 s{G.sQOFF}, s{G.sQOFF}, s{G.sT}")
    e(f"s_mov_b32 s{G.sSC}, {f32(math.log2(math.e) / math.sqrt(128.0))}")
    e(f"s_mov_b32 s{G.sTASK}, 0")
    e.fence()
    e.label("L_G_task")
    e.vm, e.lg = [], []
    g_arrive(e)
    e(f"ds_read_b32 v{G.FL}, v{G.FLR}", "fl")
    g_sync(e, spins)
    for kk in range(NSG):
        g_dma(e, kk, kk, kk)
    e.wait_vm(lambda t: t == 0)
    g_arrive(e)
    e(f"ds_read_b32 v{G.FL}, v{G.FLR}", "fl")
    g_sync(e, spins)
    for x in g_reads_A(0):
        e(*x)
    for i in range(9):
        e(*g_read_B(0, i))
    NK = 18
    for kk in range(NK):
        nxt = kk + 1 < NK
        pend = []
        for i in range(9):
            e.wait_lg(lambda t: t == ("a", kk) or t == ("b", kk, i))
            for j in range(2):
                d = G.ACC + 8 * i + 4 * j
                c = "0" if kk == 0 else vr(d)
                e(f"v_mfma_f32_16x16x32_bf16 {vr(d)}, {vr(G.AF + 8*(kk&1) + 4*j)}, {vr(G.B+4*i)}, {c}")
                if pend and i >= 4:
                    e(*pend.pop(0))
                    if pend and len(pend) > 2 * (9 - i) - j - 1:
                        e(*pend.pop(0))
            if nxt:
                if i == 1:
                    e.wait_lg(lambda t: isinstance(t, tuple) and t[1] == kk)
                    e.wait_vm(lambda t: t == kk + 1)
                    g_arrive(e)
                if i == 2:
                    e(f"ds_read_b32 v{G.FL}, v{G.FLR}", "fl")
                if i == 3:
                    g_sync(e, spins)
                    if kk + NSG < NK:
                        g_dma(e, kk + NSG, kk % NSG, kk + NSG)
                    pend += g_reads_A(kk + 1)
                    pend += [g_read_B(kk + 1, ii) for ii in range(4)]
                if i >= 4:
                    pend.append(g_read_B(kk + 1, i))
        while pend:
            e(*pend.pop(0))
    e(f"s_mov_b32 s{G.sT}, s{G.sQOFF}")
    for i in range(9):
        for j in range(2):
            d = G.ACC + 8 * i + 4 * j
            for k in range(4):
                e(f"v_mul_f32 v{d+k}, s{G.sSC}, v{d+k}")
            e(f"v_cvt_pk_bf16_f32 v{d}, v{d}, v{d+1}")
            e(f"v_cvt_pk_bf16_f32 v{d+1}, v{d+2}, v{d+3}")
            e(f"buffer_store_dwordx2 {vr(d,2)}, v{G.QST}, {sr(S_WS)}, s{G.sT} offen offset:{512*j}", "qst")
        e(f"s_add_u32 s{G.sT}, s{G.sT}, 4096")
    e(f"s_add_u32 s{G.sTASK}, s{G.sTASK}, 1")
    e(f"v_mov_b32 v{G.T0}, s{G.sTASK}")
    e.wait_vm()
    e(f"ds_write_b32 v{G.FQW}, v{G.T0}")
    e(f"s_add_u32 s{G.sQOFF}, s{G.sQOFF}, 36864")
    e(f"s_add_u32 s{G.sWq}, s{G.sWq}, 256")
    e(f"s_cmp_lt_u32 s{G.sTASK}, 4")
    e.branch("s_cbranch_scc1 L_G_task")
    e("s_waitcnt lgkmcnt(0)")
    e("s_endpgm")
    emit_spins(e, spins)


def gen_K1(e):
    e.raw(".globl k1_kernel\n.p2align 8\n.type k1_kernel,@function\nk1_kernel:")
    prologue(e, "L_k1_end")
    e("s_mov_b32 s90, 0x40000")
    e(f"v_lshlrev_b32 v1, 2, v0")
    e(f"v_add_u32 v1, {LDS_FL}, v1")
    e("v_mov_b32 v2, 0")
    e("v_cmp_gt_u32 vcc, 16, v0")
    e("s_and_saveexec_b64 s[30:31], vcc")
    e("ds_write_b32 v1, v2")
    e("s_mov_b64 exec, s[30:31]")
    e("s_waitcnt lgkmcnt(0)")
    e("s_barrier")
    e.lg = []
    e(f"s_cmp_ge_u32 s{sWAVE}, 4")
    e.branch("s_cbranch_scc1 L_G")
    gen_A(e)
    e.label("L_G")
    e.hist = []
    gen_G(e)
    e.label("L_bail")
    e("s_waitcnt vmcnt(0) lgkmcnt(0)")
    e.label("L_k1_end")
    e("s_endpgm")


class O:
    LB1, LB1b, LB2, WDMA, WDMA5, W0, W1, W5, T0, T1, T2, OST, RED = range(1, 14)
    B = 16
    AF = 52
    ACC = 92
    sO, sWo, sT, sT2, sCNT, sLB, sE, sP = range(70, 78)


OST_BYTES = 5120
NSO = 3


def o_tiles():
    t = []
    for i in range(9):
        for j in range(5):
            if j < 4 or i < 5:
                t.append((i, j))
    return t


def gen_K2(e):
    e.raw(".globl k2_kernel\n.p2align 8\n.type k2_kernel,@function\nk2_kernel:")
    e.hist = []
    prologue(e, "L_k2_end")
    tiles = o_tiles()
    acc = {t: O.ACC + 4 * k for k, t in enumerate(tiles)}
    e(f"s_lshr_b32 s{O.sP}, s{sJ}, 1")
    e(f"s_and_b32 s{O.sE}, s{sJ}, 1")
    e(f"v_lshlrev_b32 v{O.T0}, 4, v0")
    e(f"s_lshl_b32 s{O.sT}, s{O.sE}, 12")
    e(f"v_add_u32 v{O.LB1}, s{O.sT}, v{O.T0}")
    e(f"v_add_u32 v{O.LB1b}, 4096, v{O.LB1}")
    e(f"s_cmp_eq_u32 s{O.sE}, 0")
    e(f"s_cselect_b32 s{O.sT}, 5120, 0")
    e(f"v_add_u32 v{O.LB2}, s{O.sT}, v{O.T0}")
    e(f"v_lshrrev_b32 v{O.T1}, 4, v0")
    e(f"v_lshrrev_b32 v{O.T0}, 2, v0")
    e(f"v_mul_u32_u24 v{O.WDMA}, 1152, v{O.T0}")
    e(f"v_lshrrev_b32 v{O.T2}, 1, v0")
    e(f"v_xor_b32 v{O.T2}, v{O.T2}, v{O.T1}")
    e(f"v_and_b32 v{O.T2}, 1, v{O.T2}")
    e(f"v_lshl_add_u32 v{O.WDMA}, v{O.T2}, 5, v{O.WDMA}")
    e(f"v_and_b32 v{O.T2}, 1, v0")
    e(f"v_lshl_add_u32 v{O.WDMA}, v{O.T2}, 4, v{O.WDMA}")
    e(f"s_mul_i32 s{O.sT}, s{O.sP}, 288")
    e(f"s_mul_i32 s{O.sT2}, s{O.sE}, 160")
    e(f"s_add_u32 s{O.sT2}, s{O.sT2}, s{O.sT}")
    e(f"v_add_u32 v{O.WDMA}, s{O.sT2}, v{O.WDMA}")
    e(f"v_lshrrev_b32 v{O.WDMA5}, 1, v0")
    e(f"v_mul_u32_u24 v{O.WDMA5}, 1152, v{O.WDMA5}")
    e(f"v_lshl_add_u32 v{O.WDMA5}, v{O.T2}, 4, v{O.WDMA5}")
    e(f"s_add_u32 s{O.sT}, s{O.sT}, 128")
    e(f"v_add_u32 v{O.WDMA5}, s{O.sT}, v{O.WDMA5}")
    e(f"s_mul_i32 s{O.sLB}, s{sW}, {NSO*OST_BYTES}")
    e(f"v_lshlrev_b32 v{O.W0}, 6, v{O.T0}")
    e(f"v_and_b32 v{O.T2}, 3, v0")
    e(f"v_lshl_add_u32 v{O.W0}, v{O.T2}, 3, v{O.W0}")
    e(f"v_and_b32 v{O.T2}, 1, v{O.T1}")
    e(f"v_lshl_add_u32 v{O.W0}, v{O.T2}, 5, v{O.W0}")
    e(f"v_xor_b32 v{O.W1}, 32, v{O.W0}")
    e(f"v_add_u32 v{O.W0}, s{O.sLB}, v{O.W0}")
    e(f"v_add_u32 v{O.W1}, s{O.sLB}, v{O.W1}")
    e(f"v_lshlrev_b32 v{O.W5}, 3, v0")
    e(f"v_add_u32 v{O.W5}, s{O.sLB}, v{O.W5}")
    e(f"s_lshl_b32 s{O.sT}, s{sPAIR}, 2")
    e(f"s_add_u32 s{O.sT}, s{O.sT}, s{sW}")
    e(f"s_mul_i32 s{O.sO}, s{O.sT}, {32*9216}")
    e(f"s_add_u32 s{O.sO}, s{O.sO}, {OWS}")
    e(f"s_mul_i32 s{O.sWo}, s{sW}, {1024*1152}")

    def dmaW(buf, tag):
        b = buf * OST_BYTES
        for cb in range(2):
            for u in range(2):
                e(f"s_add_u32 m0, s{O.sLB}, {b + cb*2048 + u*1024 - cb*64}")
                if u == 0:
                    so = f"s{O.sWo}"
                else:
                    e(f"s_add_u32 s{O.sT}, s{O.sWo}, {16*1152}")
                    so = f"s{O.sT}"
                e(f"buffer_load_dwordx4 v{O.WDMA}, {sr(S_WO)}, {so} offen offset:{64*cb} lds", tag)
        e(f"s_add_u32 m0, s{O.sLB}, {b + 4096}")
        e(f"buffer_load_dwordx4 v{O.WDMA5}, {sr(S_WO)}, s{O.sWo} offen lds", tag)
        e(f"s_add_u32 s{O.sWo}, s{O.sWo}, {32*1152}")

    def loadB(i, tag):
        if i < 4:
            return (f"buffer_load_dwordx4 {vr(O.B+4*i)}, v{O.LB1}, {sr(S_WS)}, s{O.sO} offen offset:{1024*i}", tag)
        if i == 4:
            return (f"buffer_load_dwordx4 {vr(O.B+4*i)}, v{O.LB1b}, {sr(S_WS)}, s{O.sO} offen", tag)
        return (f"buffer_load_dwordx4 {vr(O.B+4*i)}, v{O.LB2}, {sr(S_WS)}, s{O.sO} offen offset:{1024*(i-5)}", tag)

    def readsA(buf, par, tag):
        b = buf * OST_BYTES
        out = []
        for j in range(4):
            for u in range(2):
                out.append((f"ds_read_b64_tr_b16 {vr(O.AF+20*par+4*j+2*u,2)}, v{O.W1 if j&1 else O.W0} offset:{b + (j>>1)*2048 + u*1024}", tag))
        for u in range(2):
            out.append((f"ds_read_b64_tr_b16 {vr(O.AF+20*par+16+2*u,2)}, v{O.W5} offset:{b + 4096 + u*512}", tag))
        return out

    NK = 32
    e.vm, e.lg = [], []
    for kk in range(NSO):
        dmaW(kk, ("w", kk))
    for i in range(9):
        e(*loadB(i, ("b", 0, i)))
    e(f"s_add_u32 s{O.sO}, s{O.sO}, 9216")
    e.wait_vm(lambda t: t == ("w", 0))
    for x in readsA(0, 0, ("a", 0)):
        e(*x)
    for kk in range(NK):
        par = kk & 1
        nxt = kk + 1 < NK
        pend = []
        e.wait_lg(lambda t: t == ("a", kk))
        for i in range(9):
            e.wait_vm(lambda t: t == ("b", kk, i))
            js = [j for j in range(5) if (i, j) in acc]
            for j in js:
                c = "0" if kk == 0 else vr(acc[(i, j)])
                e(f"v_mfma_f32_16x16x32_bf16 {vr(acc[(i,j)])}, {vr(O.AF+20*par+4*j)}, {vr(O.B+4*i)}, {c}")
                if pend:
                    e(*pend.pop(0))
            if nxt:
                e(*loadB(i, ("b", kk + 1, i)))
                if i == 0:
                    if kk + NSO < NK:
                        dmaW(kk % NSO, ("w", kk + NSO))
                if i == 2:
                    e.wait_vm(lambda t: t == ("w", kk + 1))
                    pend += readsA((kk + 1) % NSO, par ^ 1, ("a", kk + 1))
        if nxt:
            e(f"s_add_u32 s{O.sO}, s{O.sO}, 9216")
    e("s_waitcnt vmcnt(0) lgkmcnt(0)")
    e.vm, e.lg = [], []
    e("s_barrier")
    e(f"v_lshlrev_b32 v{O.RED}, 4, v0")
    e(f"v_and_b32 v{O.T0}, 15, v0")
    e(f"v_mul_u32_u24 v{O.OST}, 2304, v{O.T0}")
    e(f"v_lshl_add_u32 v{O.OST}, v{O.T1}, 3, v{O.OST}")
    e(f"s_mul_i32 s{O.sT}, s{sB}, {144*2304}")
    e(f"s_mul_i32 s{O.sT2}, s{sBLK}, 1152")
    e(f"s_add_u32 s{O.sT}, s{O.sT}, s{O.sT2}")
    e(f"s_mul_i32 s{O.sT2}, s{O.sP}, 288")
    e(f"s_add_u32 s{O.sT}, s{O.sT}, s{O.sT2}")
    e(f"v_add_u32 v{O.OST}, s{O.sT}, v{O.OST}")
    e(f"s_mul_i32 s{O.sO}, s{O.sE}, {4*16*2304}")
    e(f"s_cmp_eq_u32 s{O.sE}, 0")
    e(f"s_cselect_b32 s{O.sWo}, {5*16*2304}, 0")
    e(f"s_mul_i32 s{O.sCNT}, s{O.sE}, 160")
    for w in range(1, 4):
        e(f"s_cmp_eq_u32 s{sW}, {w}")
        e.branch(f"s_cbranch_scc1 L_red{w}")
    NT = len(tiles)

    def slot(src, k):
        idx = len([x for x in range(k) if x % 4 != src])
        return (src * 31 + idx) * 1024

    for w in range(4):
        e.label(f"L_red{w}")
        e.hist = []
        e.lg = []
        cur = None
        for k, t in enumerate(tiles):
            if k % 4 == w:
                continue
            a = slot(w, k)
            if cur is None or a - cur > 65000:
                cur = a
                e(f"v_add_u32 v{O.T0}, {cur}, v{O.RED}")
            e(f"ds_write_b128 v{O.T0}, {vr(acc[t])} offset:{a-cur}")
        e("s_waitcnt lgkmcnt(0)")
        e.lg = []
        e("s_barrier")
        e(f"v_add_u32 v{O.T2}, 63488, v{O.RED}")
        own = [k for k in range(NT) if k % 4 == w]
        for k in own:
            t = tiles[k]
            tmp = O.B
            n = 0
            for src in range(4):
                if src == w:
                    continue
                a = slot(src, k)
                if a < 63488:
                    e(f"ds_read_b128 {vr(tmp+4*n)}, v{O.RED} offset:{a}", n)
                else:
                    e(f"ds_read_b128 {vr(tmp+4*n)}, v{O.T2} offset:{a-63488}", n)
                n += 1
            for n in range(3):
                e.wait_lg(lambda x: x == n)
                for q in range(4):
                    e(f"v_add_f32 v{acc[t]+q}, v{acc[t]+q}, v{tmp+4*n+q}")
            e(f"v_cvt_pk_bf16_f32 v{acc[t]}, v{acc[t]}, v{acc[t]+1}")
            e(f"v_cvt_pk_bf16_f32 v{acc[t]+1}, v{acc[t]+2}, v{acc[t]+3}")
            i, j = t
            if i < 5:
                e(f"s_add_u32 s{O.sT}, s{O.sO}, {i*16*2304}")
            else:
                e(f"s_add_u32 s{O.sT}, s{O.sWo}, {(i-5)*16*2304}")
            if j < 4:
                e(f"s_add_u32 s{O.sT}, s{O.sT}, s{O.sCNT}")
                off = 32 * j
            else:
                off = 128
            e(f"buffer_store_dwordx2 {vr(acc[t],2)}, v{O.OST}, {sr(S_OUT)}, s{O.sT} offen offset:{off}")
        e("s_waitcnt vmcnt(0)")
        e("s_endpgm")
    e.label("L_k2_end")
    e("s_endpgm")


def kd(name, vg):
    return f""".p2align 6
.amdhsa_kernel {name}
  .amdhsa_next_free_vgpr {vg}
  .amdhsa_next_free_sgpr 102
  .amdhsa_accum_offset {vg}
  .amdhsa_group_segment_fixed_size 0
  .amdhsa_kernarg_size 104
  .amdhsa_user_sgpr_count 2
  .amdhsa_user_sgpr_kernarg_segment_ptr 1
  .amdhsa_system_sgpr_workgroup_id_x 1
.end_amdhsa_kernel"""


def main():
    e = E()
    e.raw(f"; @launch kernel=k1_kernel grid=(256,1,1) block=(512,1,1) lds={LDS_TOTAL}")
    e.raw(f"; @launch kernel=k2_kernel grid=(256,1,1) block=(256,1,1) lds={124*1024}")
    e.raw('.amdgcn_target "amdgcn-amd-amdhsa--gfx950"\n.text')
    gen_K1(e)
    gen_K2(e)
    e.raw('.section .rodata,"a"')
    e.raw(kd("k1_kernel", 256))
    e.raw(kd("k2_kernel", 256))
    sys.stdout.write(e.text())
    print(f"instructions: {e.n_ins}, max vgpr {e.maxv}", file=sys.stderr)


main()
```

```python
import sys, math, struct, os
from emit import E, vr, sr

NAME = "concat_heads__mha_block_cached__gqa_block_cached__near_ridge"
WS_BYTES = 292618240
OWS = 0
NI = 8
NT = NI // 2
NX = 4
LDS_QT1 = NI * 8192
LDS_R1 = LDS_QT1 + 8192
LDS_R2 = LDS_R1 + 36864
LDS_QT2 = LDS_R2 + 36864
LDS_FL = LDS_QT2 + 8192
LDS_X = LDS_R1
LDS_W = LDS_R2
LDS_OST = LDS_QT1
LDS_TOTAL = LDS_FL + 64
assert LDS_TOTAL <= 163840, LDS_TOTAL
THR = 16.0
TS = int(os.environ.get("TS", "0"))
TSOFF = 80000000
EXP = os.environ.get("EXP", "")
KVF = os.environ.get("KVF", "nt")
OOB = 0x40000000
QSTEP = int(os.environ.get("QSTEP", "4"))


def f32(x):
    return "0x%08x" % struct.unpack("<I", struct.pack("<f", x))[0]


S_X, S_K, S_V, S_WQ, S_WO, S_OUT, S_DBG, S_WS = 32, 36, 40, 44, 48, 52, 56, 60
sWAVE, sW, sPAIR, sB, sJ, sBLK = 64, 65, 66, 67, 68, 69
sRET = 88
sBUD = 90
sTS = 91


def prologue(e, endlabel):
    e("s_cmp_ge_u32 s2, 256")
    e(f"s_cbranch_scc1 {endlabel}")
    e("s_load_dwordx16 s[4:19], s[0:1], 0")
    e("s_load_dwordx8 s[20:27], s[0:1], 64")
    e("s_load_dwordx2 s[28:29], s[0:1], 96")
    e("v_lshrrev_b32 v1, 6, v0")
    e(f"v_readfirstlane_b32 s{sWAVE}, v1")
    e("v_and_b32 v0, 63, v0")
    e(f"v_lshlrev_b32 v1, 2, v0")
    e(f"v_and_b32 v1, 63, v1")
    e(f"v_add_u32 v1, {LDS_FL}, v1")
    e("v_mov_b32 v2, 0")
    e("ds_write_b32 v1, v2")
    e(f"s_and_b32 s{sW}, s{sWAVE}, 3")
    e("s_and_b32 s3, s2, 7")
    e("s_lshl_b32 s3, s3, 2")
    e(f"s_lshr_b32 s{sPAIR}, s2, 6")
    e(f"s_add_u32 s{sPAIR}, s{sPAIR}, s3")
    e(f"s_lshr_b32 s{sJ}, s2, 3")
    e(f"s_and_b32 s{sJ}, s{sJ}, 7")
    e(f"s_and_b32 s{sB}, s{sPAIR}, 15")
    e(f"s_lshr_b32 s{sBLK}, s{sPAIR}, 4")
    e(f"s_mov_b32 s{sBUD}, 0x40000")
    for dst, nbytes in ((S_X, 16 * 144 * 576 * 2), (S_K, 1 << 26), (S_V, 1 << 26), (S_WQ, 576 * 4096 * 2),
                        (S_WO, 576 * 4096 * 2), (S_OUT, 16 * 144 * 1152 * 2), (S_DBG, 256), (S_WS, WS_BYTES)):
        e(f"s_mov_b32 s{dst+2}, {nbytes}")
        e(f"s_mov_b32 s{dst+3}, 0x20000")
    e("s_waitcnt lgkmcnt(0)")
    e.lg = []
    e(f"s_cmp_eq_u32 s{sBLK}, 0")
    for dst, a, b in ((S_X, 4, 14), (S_K, 6, 16), (S_V, 8, 18), (S_WQ, 10, 20), (S_WO, 12, 22)):
        e(f"s_cselect_b32 s{dst}, s{a}, s{b}")
        e(f"s_cselect_b32 s{dst+1}, s{a+1}, s{b+1}")
    for dst, src in ((S_OUT, 24), (S_DBG, 26), (S_WS, 28)):
        e(f"s_mov_b32 s{dst}, s{src}")
        e(f"s_and_b32 s{dst+1}, s{src+1}, 0xffff")
    for dst in (S_X, S_K, S_V, S_WQ, S_WO):
        e(f"s_and_b32 s{dst+1}, s{dst+1}, 0xffff")


def ts_init(e):
    if not TS:
        return
    e(f"s_lshl_b32 s{sTS}, s2, 3")
    e(f"s_add_u32 s{sTS}, s{sTS}, s{sWAVE}")
    e(f"s_lshl_b32 s{sTS}, s{sTS}, 11")
    e(f"s_add_u32 s{sTS}, s{sTS}, {TSOFF}")


def ts(e, va, vd, budget=False):
    if TS != 1:
        return
    e("s_memtime s[92:93]")
    e("s_waitcnt lgkmcnt(0)")
    e(f"v_mov_b32 v{va}, 0")
    e(f"v_mov_b32 v{vd}, s92")
    e(f"buffer_store_dword v{vd}, v{va}, {sr(S_WS)}, s{sTS} offen")
    e.vm.pop()
    e(f"s_add_u32 s{sTS}, s{sTS}, 4")
    if budget:
        e(f"v_mov_b32 v{vd}, s{sBUD}")
        e(f"buffer_store_dword v{vd}, v{va}, {sr(S_WS)}, s{sTS} offen")
        e.vm.pop()
        e(f"s_add_u32 s{sTS}, s{sTS}, 4")


def flag_check(e, ool, vfl, vaddr, sF, off, tag="fl"):
    e.wait_lg(lambda t: t == tag)
    e(f"v_cmp_gt_u32 vcc, s{sF}, v{vfl}")
    lab = e.newlabel("spin")
    back = e.newlabel("spinb")
    e.branch(f"s_cbranch_vccnz {lab}", fence=False)
    e.label(back)

    def f(e):
        e.label(lab)
        e.hist = []
        e(f"ds_read_b32 v{vfl}, v{vaddr} offset:{off}")
        e(f"s_sub_u32 s{sBUD}, s{sBUD}, 1")
        e("s_cbranch_scc1 L_bail")
        e("s_waitcnt lgkmcnt(0)")
        e(f"v_cmp_gt_u32 vcc, s{sF}, v{vfl}")
        e.branch(f"s_cbranch_vccz {back}", fence=False)
        e.branch(f"s_branch {lab}", fence=False)
    ool.append(f)


def flag_wait(e, vfl, vaddr, sF, off, sleep=2):
    lab = e.newlabel("fw")
    e.label(lab)
    if sleep:
        e(f"s_sleep {sleep}")
    e(f"s_sub_u32 s{sBUD}, s{sBUD}, 1")
    e("s_cbranch_scc1 L_bail")
    e(f"ds_read_b32 v{vfl}, v{vaddr} offset:{off}")
    e("s_waitcnt lgkmcnt(0)")
    e.lg = []
    e(f"v_cmp_gt_u32 vcc, s{sF}, v{vfl}")
    e.branch(f"s_cbranch_vccnz {lab}", fence=False)


class Item:
    def __init__(self, do, kind, after=-1, before=10**9, tag=None):
        self.do, self.kind, self.after, self.before, self.tag = do, kind, after, before, tag

    def emit(self, e):
        if callable(self.do):
            self.do(e)
        else:
            e(self.do, self.tag)


COST = dict(s=1, v=1, t=2, l=2, d=3, w=2)


def schedule(e, mfmas, queues):
    for k, (txt, pre) in enumerate(mfmas):
        for q in queues:
            last = -1
            for i, it in enumerate(q):
                if it.before <= k:
                    last = i
            for _ in range(last + 1):
                q.pop(0).emit(e)
        if pre:
            pre(e)
        e(txt)
        slot = 0
        valu_seen = False
        progress = True
        while slot < 3 and progress:
            progress = False
            cand = None
            for q in queues:
                if q and q[0].after <= k:
                    kd = q[0].kind
                    if kd in "ldw" and not valu_seen and slot + COST[kd] <= 3 + (1 if slot == 0 else 0):
                        cand = q
                        break
            if cand is None and slot == 0:
                for q in queues:
                    if q and q[0].after <= k and q[0].kind == "s":
                        cand = q
                        break
                if cand is None:
                    slot = 1
            if cand is None:
                for q in queues:
                    if q and q[0].after <= k and q[0].kind in "vt" and slot + COST[q[0].kind] <= 3:
                        cand = q
                        break
            if cand is None:
                for q in queues:
                    if q and q[0].after <= k and q[0].kind == "s":
                        cand = q
                        break
            if cand is not None:
                it = cand.pop(0)
                it.emit(e)
                slot += COST[it.kind]
                if it.kind in "vt":
                    valu_seen = True
                progress = True
    for q in queues:
        while q:
            q.pop(0).emit(e)


class A:
    LIN16, KDMA, VDMA, V0B, V1B, KRD, V0, V1, FLW, FLR, EP, FL, MX, T0, T1, T2 = range(1, 17)
    L = 17
    C = 20
    S = 32
    FP = 56
    Q = 104
    O = 152
    sF, sRD, sWR, sG, sTHR, sFLOOR, cK1, cK2, cV1, cV2, sSTEP, sGEN, sT2, sOOFF, sLEFT, sT = range(70, 86)


NSTEADY = 2 * (NI - 3)
NOST = 8


def a_dma_items(kind, after):
    it = []
    if kind == "k":
        it.append(Item(f"s_add_u32 m0, s{A.sWR}, s{A.cK1}", "s", after))
        it.append(Item(f"buffer_load_dwordx4 v{A.KDMA}, {sr(S_K)}, s{A.sG} offen {KVF} lds", "d", after))
        it.append(Item(f"s_add_u32 m0, s{A.sWR}, s{A.cK2}", "s", after))
        it.append(Item(f"buffer_load_dwordx4 v{A.KDMA}, {sr(S_K)}, s{A.sG} offen offset:64 {KVF} lds", "d", after))
    else:
        it.append(Item(f"s_add_u32 m0, s{A.sWR}, s{A.cV1}", "s", after))
        it.append(Item(f"buffer_load_dwordx4 v{A.VDMA}, {sr(S_V)}, s{A.sG} offen {KVF} lds", "d", after))
        it.append(Item(f"s_add_u32 m0, s{A.sWR}, s{A.cV2}", "s", after))
        it.append(Item(f"buffer_load_dwordx4 v{A.VDMA}, {sr(S_V)}, s{A.sG} offen offset:64 {KVF} lds", "d", after))
        it.append(Item(f"s_add_u32 s{A.sG}, s{A.sG}, 8192", "s", after))
        it.append(Item(f"s_sub_u32 s{A.sLEFT}, s{A.sLEFT}, 1\ns_cselect_b32 s{A.sG}, {OOB}, s{A.sG}", "s", after))
        it.append(Item(f"s_add_u32 s{A.sWR}, s{A.sWR}, 16384", "s", after))
        it.append(Item(f"s_and_b32 s{A.sWR}, s{A.sWR}, {NT*16384-1}", "s", after))
    return it


def a_qread(e, sbase, d01, d8):
    e(f"v_add_u32 v{A.T2}, s{sbase}, v{A.LIN16}")
    for s_ in range(4):
        e(f"ds_read_b128 {vr(d8+4*s_)}, v{A.T2} offset:{32768+1024*s_}")
    e(f"s_lshl_b32 s{A.sT2}, s{sW}, 13")
    e(f"v_add_u32 v{A.T2}, s{A.sT2}, v{A.T2}")
    for i in range(8):
        e(f"ds_read_b128 {vr(d01+4*i)}, v{A.T2} offset:{1024*i}")


def a_signal(e):
    e(f"s_lshl_b32 s{A.sT}, s{sPAIR}, 3")
    e(f"s_lshr_b32 s{A.sT2}, s{sJ}, 2")
    e(f"s_lshl_b32 s{A.sT2}, s{A.sT2}, 2")
    e(f"s_add_u32 s{A.sT}, s{A.sT}, s{A.sT2}")
    e(f"v_mov_b32 v{A.T0}, s{A.sT}")
    e(f"s_and_b32 s{A.sT2}, s{sJ}, 3")
    e(f"s_lshl_b32 s{A.sT2}, s{A.sT2}, 3")
    e(f"s_lshl_b32 s{A.sT2}, 1, s{A.sT2}")
    e(f"v_mov_b32 v{A.T1}, s{A.sT2}")
    e("s_mov_b64 exec, 1")
    e(f"buffer_atomic_add v{A.T1}, v{A.T0}, {sr(S_DBG)}, 0 offen sc1")
    e.vm.pop()
    e("s_mov_b64 exec, -1")


def a_qstep_work(e, R, ool):
    skip = e.newlabel("qskip")
    nosig = e.newlabel("nosig")
    e(f"s_cmp_eq_u32 s{A.sGEN}, 0")
    e(f"s_cbranch_scc1 {skip}")
    e(f"s_cmp_lg_u32 s{sW}, 0")
    e(f"s_cbranch_scc1 {nosig}")
    a_signal(e)
    e.label(nosig)
    e(f"s_cmp_eq_u32 s{A.sGEN}, 3")
    e(f"s_cbranch_scc1 {skip}")
    e(f"s_mov_b32 s{A.sT}, 4")
    flag_wait(e, A.FL, A.FLR, A.sT, 32, sleep=0)
    if R == 2:
        e(f"s_cmp_eq_u32 s{A.sGEN}, 1")
        e(f"s_mov_b32 s{A.sT}, {LDS_R2}")
        e(f"s_cselect_b32 s{A.sT}, {LDS_R1}, s{A.sT}")
        a_qread(e, A.sT, A.O + 64, A.Q + 32)
        e("s_waitcnt lgkmcnt(0)")
    e(f"s_add_u32 s{A.sT}, s{A.sGEN}, 1")
    e(f"v_mov_b32 v{A.T0}, s{A.sT}")
    e(f"ds_write_b32 v{A.FLW}, v{A.T0} offset:48")
    e.label(skip)


def a_post(e, R, p, half, looped, ool):
    if looped:
        lab = e.newlabel("spec")
        back = e.newlabel("specb")
        qs = (half == 0 and QSTEP % 3 == p)
        if qs:
            e(f"s_cmp_eq_u32 s{A.sSTEP}, {QSTEP}")
            lab2 = e.newlabel("specq")
            back2 = e.newlabel("specqb")
            e.branch(f"s_cbranch_scc1 {lab2}", fence=False)
            e.label(back2)

            def f2(e):
                e.label(lab2, full_fence=True)
                e.lg = []
                a_qstep_work(e, R, ool)
                e.branch(f"s_branch {back2}")
            ool.append(f2)
        e(f"s_cmp_lt_u32 s{A.sSTEP}, {NT-1-half}")
        e.branch(f"s_cbranch_scc1 {lab}", fence=False)
        e(f"s_waitcnt vmcnt({NSTEADY})")
        e.label(back)

        def f(e):
            e.label(lab)
            e(f"s_waitcnt vmcnt({NSTEADY+NOST})")
            e(f"s_branch {back}")
        ool.append(f)
    else:
        e(f"s_waitcnt vmcnt({NSTEADY})")
    e(f"s_add_u32 s{A.sF}, s{A.sF}, 1")


def a_step(e, R, p, nextp, looped, ool):
    Gr = lambda k: A.FP + 16 * (k % 3)
    K = [Gr(p) + 4 * i for i in range(4)] + [Gr(p + 1) + 4 * i for i in range(4)]
    V = [Gr(p + 2) + 4 * i for i in range(4)] + [Gr(p) + 4 * i for i in range(4)]
    Kn = [Gr(nextp) + 4 * i for i in range(4)] + [Gr(nextp + 1) + 4 * i for i in range(4)]
    base = 8 * R
    lastqk = 8 * (R - 1)
    lastpv = base + 8 * (R - 1)
    wl = lambda tag: (lambda e: e.wait_lg(lambda t: t == tag))
    M = []
    for r in range(R):
        for idx in range(8):
            u, s = idx >> 2, idx & 3
            d = A.S + 8 * r + 4 * u
            c = vr(A.C + 4 * r) if s == 0 else vr(d)
            M.append((f"v_mfma_f32_16x16x32_bf16 {vr(d)}, {vr(K[idx])}, {vr(A.Q+16*r+4*s)}, {c}", wl(("k", idx)) if r == 0 else None))
    for r in range(R):
        for T in range(8):
            o = A.O + 32 * r + 4 * T
            M.append((f"v_mfma_f32_16x16x32_bf16 {vr(o)}, {vr(V[T])}, {vr(A.S+8*r)}, {vr(o)}", wl(("v", T)) if r == 0 else None))
    QL = []

    def vread(T, u, after):
        QL.append(Item(f"ds_read_b64_tr_b16 {vr(V[T]+2*u,2)}, v{A.V1 if T&1 else A.V0} offset:{8192+(T>>1)*2048+u*1024}", "l", after, base, ("v", T)))

    for T in range(4):
        vread(T, 0, 2 * T)
        vread(T, 1, 2 * T + 1)
    for T in range(4, 8):
        vread(T, 0, lastqk + T - 4)
        vread(T, 1, lastqk + T - 4)
    early = [i for i in range(8) if Kn[i] in K[4:]]
    late = [i for i in range(8) if i not in early]
    for n, i in enumerate(early):
        QL.append(Item(f"ds_read_b128 {vr(Kn[i])}, v{A.KRD} offset:{1024*i}", "l", base + n, tag=("kn", i)))
    for i in late:
        QL.append(Item(f"ds_read_b128 {vr(Kn[i])}, v{A.KRD} offset:{1024*i}", "l", lastpv + V.index(Kn[i]), tag=("kn", i)))
    QS = []
    for half, h0, hend in ((0, 0, base), (1, base, 2 * base)):
        QS.append(Item(lambda e, half=half: a_post(e, R, p, half, looped, ool), "s", h0 + 7))
        QS.append(Item(f"v_add_u32 v{A.EP}, 1, v{A.EP}", "v", h0 + 7))
        QS.append(Item(f"ds_write_b32 v{A.FLW}, v{A.EP}", "w", h0 + 8, tag="flw"))
        QS.append(Item(f"ds_read_b32 v{A.FL}, v{A.FLR}", "l", hend - 4, tag="fl"))
        if half == 0:
            QS.append(Item(f"s_add_u32 s{A.sRD}, s{A.sRD}, 16384\ns_and_b32 s{A.sRD}, s{A.sRD}, {NT*16384-1}", "s", hend - 4))
            QS.append(Item(f"v_add_u32 v{A.KRD}, s{A.sRD}, v{A.LIN16}", "v", hend - 4))
            QS.append(Item(lambda e: flag_check(e, ool, A.FL, A.FLR, A.sF, 0), "v", hend - 1, hend))
            QS += a_dma_items("k", hend - 1)
        else:
            QS.append(Item(f"v_add_u32 v{A.V0}, s{A.sRD}, v{A.V0B}", "v", hend - 4))
            QS.append(Item(f"v_add_u32 v{A.V1}, s{A.sRD}, v{A.V1B}", "v", hend - 4))
            QS.append(Item(lambda e: flag_check(e, ool, A.FL, A.FLR, A.sF, 0), "v", hend - 1))
    QD = a_dma_items("v", 0)
    for it in QD:
        it.before = 7
    QV = []
    for r in range(R):
        b = A.S + 8 * r
        e0 = 8 * r + 3 + 2
        e1 = 8 * r + 7 + 2
        need = base + 8 * r
        QV.append(Item(f"v_max3_f32 v{A.MX}, v{b}, v{b+1}, v{b+2}", "v", e0))
        QV.append(Item(f"v_max3_f32 v{A.MX}, v{A.MX}, v{b+3}, v{b+4}", "v", e1))
        QV.append(Item(f"v_max3_f32 v{A.MX}, v{A.MX}, v{b+5}, v{b+6}", "v", e1))
        QV.append(Item(f"v_max_f32 v{A.MX}, v{A.MX}, v{b+7}", "v", e1))

        def chk(e, r=r):
            e(f"v_cmp_lt_f32 vcc, s{A.sTHR}, v{A.MX}")
            lab = e.newlabel("rare")
            back = e.newlabel("rareb")
            e.branch(f"s_cbranch_vccnz {lab}", fence=False)
            e.label(back)

            def f(e):
                e.label(lab)
                e.hist = []
                e(f"s_call_b64 s[{sRET}:{sRET+1}], L_rare{r}")
                e(f"s_branch {back}")
            ool.append(f)
        QV.append(Item(chk, "t", e1))
        for i in range(8):
            QV.append(Item(f"v_exp_f32 v{b+i}, v{b+i}", "t", e1))
            if i in (2, 3, 4, 5):
                QV.append(Item(f"v_add_f32 v{A.L+r}, v{A.L+r}, v{b+i-2}", "v", e1))
        for i in range(4):
            QV.append(Item(f"v_cvt_pk_bf16_f32 v{b+i}, v{b+2*i}, v{b+2*i+1}", "v", e1, need))
        for i in range(4, 8):
            QV.append(Item(f"v_add_f32 v{A.L+r}, v{A.L+r}, v{b+i}", "v", e1))
    schedule(e, M, [QL, QD, QS, QV])
    e(f"s_mov_b32 s{A.sTHR}, {f32(THR)}")
    e(f"s_mov_b32 s{A.sFLOOR}, 0")
    e(f"s_add_u32 s{A.sSTEP}, s{A.sSTEP}, 1")
    e.lg = [("k", t[1]) if isinstance(t, tuple) and t[0] == "kn" else t for t in e.lg]


def a_rare(e, r):
    e.label(f"L_rare{r}", full_fence=True)
    b = A.S + 8 * r
    e(f"v_mov_b32 v{A.T0}, v{A.MX}")
    e(f"v_mov_b32 v{A.T1}, v{A.MX}")
    e(f"v_permlane32_swap_b32 v{A.T0}, v{A.T1}")
    e(f"v_max_f32 v{A.T0}, v{A.T0}, v{A.T1}")
    e(f"v_mov_b32 v{A.T1}, v{A.T0}")
    e(f"v_permlane16_swap_b32 v{A.T0}, v{A.T1}")
    e(f"v_max_f32 v{A.T0}, v{A.T0}, v{A.T1}")
    e(f"v_max_f32 v{A.T0}, s{A.sFLOOR}, v{A.T0}")
    for i in range(8):
        e(f"v_sub_f32 v{b+i}, v{b+i}, v{A.T0}")
    for i in range(4):
        e(f"v_sub_f32 v{A.C+4*r+i}, v{A.C+4*r+i}, v{A.T0}")
    skip = e.newlabel("rfirst")
    e(f"s_cmp_lg_u32 s{A.sFLOOR}, 0")
    e(f"s_cbranch_scc1 {skip}")
    e(f"v_exp_f32 v{A.T1}, -v{A.T0}")
    e(f"v_mul_f32 v{A.L+r}, v{A.L+r}, v{A.T1}")
    for i in range(32):
        e(f"v_mul_f32 v{A.O+32*r+i}, v{A.O+32*r+i}, v{A.T1}")
    e.label(skip)
    e.fence()
    e("s_nop 1")
    e(f"s_setpc_b64 s[{sRET}:{sRET+1}]")


def a_reset(e):
    for i in range(96):
        e(f"v_mov_b32 v{A.O+i}, 0")
    for i in range(15):
        e(f"v_mov_b32 v{A.L+i}, 0")
    e(f"s_mov_b32 s{A.sTHR}, 0xff800000")
    e(f"s_mov_b32 s{A.sFLOOR}, 0xff800000")
    e(f"s_mov_b32 s{A.sSTEP}, 0")


def a_epilogue(e, R):
    if R == 3:
        e(f"s_cmp_eq_u32 s{A.sGEN}, 0")
        e(f"s_mov_b32 s{A.sT}, {LDS_QT2}")
        e(f"s_cselect_b32 s{A.sT}, {LDS_QT1}, s{A.sT}")
        e(f"s_cmp_eq_u32 s{A.sGEN}, 2")
        e(f"s_cselect_b32 s{A.sT}, {LDS_R2+16384}, s{A.sT}")
        e(f"v_add_u32 v{A.T2}, s{A.sT}, v{A.LIN16}")
        for i in range(8):
            e(f"ds_read_b128 {vr(A.Q+4*i)}, v{A.T2} offset:{1024*i}", "qn")
    for r in range(R):
        e(f"v_mov_b32 v{A.T1}, v{A.L+r}")
        e(f"v_permlane32_swap_b32 v{A.L+r}, v{A.T1}")
        e(f"v_add_f32 v{A.L+r}, v{A.L+r}, v{A.T1}")
        e(f"v_mov_b32 v{A.T1}, v{A.L+r}")
        e(f"v_permlane16_swap_b32 v{A.L+r}, v{A.T1}")
        e(f"v_add_f32 v{A.L+r}, v{A.L+r}, v{A.T1}")
        e(f"v_rcp_f32 v{A.T0}, v{A.L+r}")
        if r < 2:
            e(f"s_lshl_b32 s{A.sT}, s{sW}, 11")
            e(f"s_add_u32 s{A.sT}, s{A.sT}, s{A.sOOFF}")
            if r == 1:
                e(f"s_add_u32 s{A.sT}, s{A.sT}, 1024")
        else:
            e(f"s_add_u32 s{A.sT}, s{A.sOOFF}, 8192")
        for s in range(4):
            o = A.O + 32 * r + 8 * s
            for i in range(8):
                e(f"v_mul_f32 v{o+i}, v{o+i}, v{A.T0}")
            for i in range(4):
                e(f"v_cvt_pk_bf16_f32 v{o+i}, v{o+2*i}, v{o+2*i+1}")
            e(f"buffer_store_dwordx4 {vr(o)}, v{A.LIN16}, {sr(S_WS)}, s{A.sT} offen sc1", "ost")
            if s < 3:
                e(f"s_add_u32 s{A.sT}, s{A.sT}, 9216")
    e(f"s_add_u32 s{A.sOOFF}, s{A.sOOFF}, 36864")


def gen_A(e):
    ool = []
    e("s_setprio 2")
    e(f"v_lshlrev_b32 v{A.LIN16}, 4, v0")
    e(f"v_and_b32 v{A.T0}, 15, v0")
    e(f"v_lshrrev_b32 v{A.T1}, 4, v0")
    e(f"v_lshlrev_b32 v{A.KDMA}, 8, v{A.T0}")
    e(f"v_lshl_add_u32 v{A.KDMA}, v{A.T1}, 4, v{A.KDMA}")
    e(f"v_lshrrev_b32 v{A.T0}, 2, v0")
    e(f"v_lshrrev_b32 v{A.T2}, 1, v0")
    e(f"v_xor_b32 v{A.T2}, v{A.T2}, v{A.T1}")
    e(f"v_and_b32 v{A.T2}, 1, v{A.T2}")
    e(f"v_lshlrev_b32 v{A.VDMA}, 8, v{A.T0}")
    e(f"v_lshl_add_u32 v{A.VDMA}, v{A.T2}, 5, v{A.VDMA}")
    e(f"v_and_b32 v{A.T2}, 1, v0")
    e(f"v_lshl_add_u32 v{A.VDMA}, v{A.T2}, 4, v{A.VDMA}")
    e(f"v_lshlrev_b32 v{A.V0B}, 6, v{A.T0}")
    e(f"v_and_b32 v{A.T2}, 3, v0")
    e(f"v_lshl_add_u32 v{A.V0B}, v{A.T2}, 3, v{A.V0B}")
    e(f"v_and_b32 v{A.T2}, 1, v{A.T1}")
    e(f"v_lshl_add_u32 v{A.V0B}, v{A.T2}, 5, v{A.V0B}")
    e(f"v_xor_b32 v{A.V1B}, 32, v{A.V0B}")
    e(f"v_mov_b32 v{A.V0}, v{A.V0B}")
    e(f"v_mov_b32 v{A.V1}, v{A.V1B}")
    e(f"s_lshl_b32 s{A.sT}, s{sW}, 2")
    e(f"s_add_u32 s{A.sT}, s{A.sT}, {LDS_FL}")
    e(f"v_mov_b32 v{A.FLW}, s{A.sT}")
    e(f"v_and_b32 v{A.T2}, 3, v0")
    e(f"v_lshlrev_b32 v{A.FLR}, 2, v{A.T2}")
    e(f"v_add_u32 v{A.FLR}, {LDS_FL}, v{A.FLR}")
    e(f"s_lshl_b32 s{A.cK1}, s{sW}, 11")
    e(f"s_add_u32 s{A.cK2}, s{A.cK1}, {1024-64}")
    e(f"s_and_b32 s{A.sT}, s{sW}, 1")
    e(f"s_lshl_b32 s{A.cV1}, s{A.sT}, 12")
    e(f"s_lshr_b32 s{A.cV2}, s{sW}, 1")
    e(f"s_lshl_b32 s{A.cV2}, s{A.cV2}, 10")
    e(f"s_add_u32 s{A.cV1}, s{A.cV1}, s{A.cV2}")
    e(f"s_add_u32 s{A.cV1}, s{A.cV1}, 8192")
    e(f"s_add_u32 s{A.cV2}, s{A.cV1}, {2048-64}")
    e(f"s_lshl_b32 s{A.sG}, s{sB}, 3")
    e(f"s_add_u32 s{A.sG}, s{A.sG}, s{sJ}")
    e(f"s_lshl_b32 s{A.sG}, s{A.sG}, 19")
    e(f"s_lshl_b32 s{A.sT}, s{A.sT}, 7")
    e(f"s_add_u32 s{A.sG}, s{A.sG}, s{A.sT}")
    e(f"s_lshr_b32 s{A.sT}, s{sW}, 1")
    e(f"s_lshl_b32 s{A.sT}, s{A.sT}, 12")
    e(f"s_add_u32 s{A.sG}, s{A.sG}, s{A.sT}")
    e(f"s_lshl_b32 s{A.sT}, s{sPAIR}, 3")
    e(f"s_add_u32 s{A.sT}, s{A.sT}, s{sJ}")
    e(f"s_mul_i32 s{A.sOOFF}, s{A.sT}, {4*36864}")
    e(f"s_mov_b32 s{A.sRD}, 0")
    e(f"s_mov_b32 s{A.sWR}, 0")
    e(f"s_mov_b32 s{A.sGEN}, 0")
    e(f"s_mov_b32 s{A.sLEFT}, 63")
    e(f"s_mov_b32 s{A.sT}, 1")
    flag_wait(e, A.FL, A.FLR, A.sT, 16, sleep=1)
    for t in range(NT):
        for it in a_dma_items("k", 0):
            it.emit(e)
        if t < NT - 1:
            for it in a_dma_items("v", 0):
                it.emit(e)
    a_reset(e)
    e(f"s_mov_b32 s{A.sT}, 2")
    flag_wait(e, A.FL, A.FLR, A.sT, 32)
    ts(e, A.T0, A.T1, True)
    e(f"s_mov_b32 s{A.sT}, {LDS_R1}")
    a_qread(e, A.sT, A.Q, A.Q + 32)
    lab = e.newlabel("q1skip")
    e(f"s_cmp_eq_u32 s{sW}, 0")
    e(f"s_cbranch_scc1 {lab}")
    e(f"s_mov_b32 s{A.sT}, {LDS_R2}")
    a_qread(e, A.sT, A.O + 64, A.Q + 32)
    e.label(lab)
    e("s_waitcnt vmcnt(0) lgkmcnt(0)")
    e.lg, e.vm = [], []
    e(f"s_mov_b32 s{A.sF}, 1")
    e(f"v_mov_b32 v{A.EP}, 1")
    e(f"ds_write_b32 v{A.FLW}, v{A.EP} offset:48")
    e(f"ds_write_b32 v{A.FLW}, v{A.EP}", "flw")
    flag_wait(e, A.FL, A.FLR, A.sF, 0, sleep=0)
    for i in range(8):
        e(f"ds_read_b128 {vr(A.FP+4*i)}, v{A.LIN16} offset:{1024*i}", ("k", i))
    e("s_waitcnt lgkmcnt(0)")
    e(f"s_cmp_eq_u32 s{sW}, 0")
    e.branch("s_cbranch_scc1 L_A3")
    for R in (2, 3):
        e.raw(".p2align 6")
        e.label(f"L_A{R}")
        e.hist = []
        e.lg = [("k", i) for i in range(8)]
        for p in range(3):
            a_step(e, R, p, (p + 1) % 3, True, ool)
        e(f"s_cmp_lt_u32 s{A.sSTEP}, 15")
        e.branch(f"s_cbranch_scc1 L_A{R}")
        a_step(e, R, 0, 0, False, ool)
        ts(e, A.T0, A.T1, True)
        a_epilogue(e, R)
        e(f"s_add_u32 s{A.sGEN}, s{A.sGEN}, 1")
        e(f"s_cmp_eq_u32 s{A.sGEN}, 4")
        e.branch("s_cbranch_scc1 L_A_end")
        if R == 2:
            for i in range(32):
                e(f"v_mov_b32 v{A.Q+i}, v{A.O+64+i}")
        a_reset(e)
        e("s_waitcnt lgkmcnt(0)")
        ts(e, A.T0, A.T1)
        e(f"s_cmp_eq_u32 s{A.sGEN}, s{sW}")
        e.branch("s_cbranch_scc1 L_A3")
        e.branch("s_branch L_A2")
    e.label("L_A_end")
    e.hist = []
    e("s_waitcnt vmcnt(0) lgkmcnt(0)")
    e(f"s_add_u32 s{A.sF}, s{A.sF}, 1")
    e(f"v_add_u32 v{A.EP}, 1, v{A.EP}")
    e(f"ds_write_b32 v{A.FLW}, v{A.EP}")
    ts(e, A.T0, A.T1)
    e(f"s_cmp_lg_u32 s{sW}, 0")
    e("s_cbranch_scc1 L_bail")
    flag_wait(e, A.FL, A.FLR, A.sF, 0, sleep=0)
    e.vm = []
    a_signal(e)
    e.branch("s_branch L_bail")
    k = 0
    while k < len(ool):
        ool[k](e)
        k += 1
    for r in range(3):
        a_rare(e, r)


class G:
    FLW, FLR, EP, FL, T0, T1, T2 = range(1, 8)
    LIN16, XDMA, WDMA, W0, W1, QST, XRD = range(8, 15)
    LB1, LB1b, LB2, ODMA, ODMA5, O0, O1, O5 = range(8, 16)
    B = 16
    AF = 52
    ACC = 84
    OACC = 92
    sF, sX, sWq, sTASK, sQOFF, sT, sT2, sSC, sXB, sXW, sXR, sKX, sCNT, cX, cW, sT3 = range(70, 86)
    sEX = 86
    sO, sWo, sLB, sE, sP, sSH = 71, 72, 74, 77, 78, 79


def g_dma_x_items(tag, after=-1):
    I = lambda t, k, tg=None: Item(t, k, after, tag=tg)
    return [
        I(f"s_add_u32 m0, s{G.sXW}, s{G.cX}", "s"),
        I(f"s_add_u32 s{G.sT}, s{G.sX}, s{G.sKX}", "s"),
        I(f"buffer_load_dwordx4 v{G.XDMA}, {sr(S_X)}, s{G.sT} offen lds", "d", tag),
        I(f"s_add_u32 m0, m0, 4096", "s"),
        I(f"s_add_u32 s{G.sT}, s{G.sT}, {4*18432}", "s"),
        I(f"buffer_load_dwordx4 v{G.XDMA}, {sr(S_X)}, s{G.sT} offen lds", "d", tag),
        I(f"s_add_u32 m0, s{G.sXW}, {8*1024}", "s"),
        I(f"s_add_u32 s{G.sT}, s{G.sXB}, s{G.sKX}", "s"),
        I(f"s_mov_b64 exec, s[{G.sEX}:{G.sEX+1}]\nbuffer_load_dwordx4 v{G.XDMA}, {sr(S_X)}, s{G.sT} offen lds\ns_mov_b64 exec, -1", "d", tag),
        I(f"s_add_u32 s{G.sKX}, s{G.sKX}, 64", "s"),
        I(f"s_cmp_eq_u32 s{G.sKX}, {18*64}\ns_cselect_b32 s{G.sKX}, {OOB}, s{G.sKX}", "s"),
        I(f"s_add_u32 s{G.sXW}, s{G.sXW}, 9216", "s"),
        I(f"s_cmp_eq_u32 s{G.sXW}, {LDS_X + NX*9216}\ns_cselect_b32 s{G.sXW}, {LDS_X}, s{G.sXW}", "s"),
    ]


def g_dma_w_items(par, tag, after=-1):
    I = lambda t, k, tg=None: Item(t, k, after, tag=tg)
    out = [I(f"s_add_u32 s{G.sT3}, s{G.sWq}, {16*8192}", "s")]
    for u in range(2):
        so = f"s{G.sT3}" if u else f"s{G.sWq}"
        for cb in range(2):
            out.append(I(f"s_add_u32 m0, s{G.cW}, {par*4096 + cb*2048 + u*1024 - cb*64}", "s"))
            out.append(I(f"buffer_load_dwordx4 v{G.WDMA}, {sr(S_WQ)}, {so} offen offset:{cb*64} lds", "d", tag))
    out.append(I(f"s_add_u32 s{G.sWq}, s{G.sWq}, {32*8192}", "s"))
    return out


def g_reads_A(par):
    return [f"ds_read_b64_tr_b16 {vr(G.AF + 16*par + 4*j + 2*hh, 2)}, v{G.W1 if j&1 else G.W0} offset:{par*4096 + (j>>1)*2048 + hh*256}"
            for j in range(4) for hh in range(2)]


def g_read_B(i):
    return f"ds_read_b128 {vr(G.B+4*i)}, v{G.XRD} offset:{i*1024}"


def g_arrive(e):
    e(f"s_add_u32 s{G.sF}, s{G.sF}, 1")
    e(f"v_add_u32 v{G.EP}, 1, v{G.EP}")
    e(f"ds_write_b32 v{G.FLW}, v{G.EP}", "flw")


def g_step(e, par, ool):
    M = []
    for i in range(9):
        for j in range(4):
            d = G.ACC + 16 * i + 4 * j
            pre = None
            if j == 0:
                pre = (lambda e, i=i: e.wait_lg(lambda t: t == ("a", 0) or t == ("b", 0, i)))
            M.append((f"v_mfma_f32_16x16x32_bf16 {vr(d)}, {vr(G.AF + 16*par + 4*j)}, {vr(G.B+4*i)}, {vr(d)}", pre))
    QB = [Item(f"s_add_u32 s{G.sXR}, s{G.sXR}, 9216", "s", -1, 3),
          Item(f"s_cmp_eq_u32 s{G.sXR}, {LDS_X + NX*9216}\ns_cselect_b32 s{G.sXR}, {LDS_X}, s{G.sXR}", "s", -1, 3),
          Item(f"v_add_u32 v{G.XRD}, s{G.sXR}, v{G.LIN16}", "v", -1, 3)]
    QB += [Item(g_read_B(i), "l", 4 * i + 3, tag=("b", 1, i)) for i in range(9)]
    QA = [Item(lambda e: e.wait_vm(lambda t: t == ("w", 1)), "s", 0)]
    QA += [Item(x, "l", 0, tag=("a", 1)) for x in g_reads_A(par ^ 1)]
    QA += [Item(lambda e: e.wait_lg(lambda t: t == ("a", 1)), "s", 14)]
    QA += g_dma_w_items(par ^ 1, ("w", 3), 14)
    QA += [Item(lambda e: flag_check(e, ool, G.FL, G.FLR, G.sF, 0), "v", 24)]
    QA += g_dma_x_items(("x", NX), 24)
    QS = [Item(lambda e: e.wait_lg(lambda t: isinstance(t, tuple) and t[0] == "b" and t[1] == 0), "s", 5),
          Item(lambda e: e.wait_vm(lambda t: t == ("x", 2)), "s", 5),
          Item(f"s_add_u32 s{G.sF}, s{G.sF}, 1", "s", 5),
          Item(f"v_add_u32 v{G.EP}, 1, v{G.EP}", "v", 5),
          Item(f"ds_write_b32 v{G.FLW}, v{G.EP}", "w", 6, 12, tag="flw"),
          Item(f"ds_read_b32 v{G.FL}, v{G.FLR}", "l", 21, 24, tag="fl")]
    schedule(e, M, [QS, QB, QA])
    dec = lambda t: (t[0], t[1] - 1) + tuple(t[2:]) if isinstance(t, tuple) else t
    e.vm = [dec(t) for t in e.vm]
    e.lg = [dec(t) for t in e.lg]


def o_tiles():
    return [(i, j) for i in range(9) for j in range(5) if j < 4 or i < 5]


OSTB = 5120


def gen_G(e):
    ool = []
    e(f"v_and_b32 v{G.T0}, 15, v0")
    e(f"v_lshrrev_b32 v{G.T1}, 4, v0")
    e(f"v_mul_u32_u24 v{G.XDMA}, 1152, v{G.T0}")
    e(f"v_lshl_add_u32 v{G.XDMA}, v{G.T1}, 4, v{G.XDMA}")
    e(f"v_lshrrev_b32 v{G.T2}, 2, v0")
    e(f"v_lshlrev_b32 v{G.WDMA}, 13, v{G.T2}")
    e(f"v_lshrrev_b32 v{G.T2}, 1, v0")
    e(f"v_lshrrev_b32 v{G.FL}, 5, v0")
    e(f"v_xor_b32 v{G.T2}, v{G.T2}, v{G.FL}")
    e(f"v_and_b32 v{G.T2}, 1, v{G.T2}")
    e(f"v_lshl_add_u32 v{G.WDMA}, v{G.T2}, 5, v{G.WDMA}")
    e(f"v_and_b32 v{G.T2}, 1, v0")
    e(f"v_lshl_add_u32 v{G.WDMA}, v{G.T2}, 4, v{G.WDMA}")
    e(f"s_lshl_b32 s{G.cW}, s{sW}, 13")
    e(f"s_add_u32 s{G.cW}, s{G.cW}, {LDS_W}")
    e(f"s_mul_i32 s{G.sXB}, s{sB}, 165888")
    e(f"s_mul_i32 s{G.sX}, s{sW}, 18432")
    e(f"s_add_u32 s{G.sX}, s{G.sX}, s{G.sXB}")
    e(f"s_add_u32 s{G.sXB}, s{G.sXB}, {8*18432}")
    e(f"s_lshl_b32 s{G.cX}, s{sW}, 10")
    e(f"s_lshl_b32 s{G.sWq}, s{sJ}, 10")
    e(f"s_lshl_b32 s{G.sT}, s{sW}, 7")
    e(f"s_add_u32 s{G.sWq}, s{G.sWq}, s{G.sT}")
    e(f"s_lshl_b32 s{G.sT}, s{sW}, 4")
    e(f"s_mov_b64 s[{G.sEX}:{G.sEX+1}], 0xffff")
    e(f"s_lshl_b64 s[{G.sEX}:{G.sEX+1}], s[{G.sEX}:{G.sEX+1}], s{G.sT}")
    e(f"s_mov_b32 s{G.sTASK}, 0")
    e(f"s_mov_b32 s{G.sF}, 0")
    e.label("L_G_task")
    e(f"s_mov_b32 s{G.sXW}, {LDS_X}")
    e(f"s_mov_b32 s{G.sXR}, {LDS_X}")
    e(f"s_mov_b32 s{G.sKX}, 0")
    e.vm, e.lg = [], []
    run = lambda items: [it.emit(e) for it in items]
    run(g_dma_x_items(("x", 0)))
    run(g_dma_w_items(0, ("w", 0)))
    run(g_dma_x_items(("x", 1)))
    run(g_dma_w_items(1, ("w", 1)))
    run(g_dma_x_items(("x", 2)))
    e(f"v_and_b32 v{G.T0}, 15, v0")
    e(f"v_lshrrev_b32 v{G.T1}, 4, v0")
    e(f"v_lshlrev_b32 v{G.LIN16}, 4, v0")
    e(f"v_lshlrev_b32 v{G.QST}, 4, v{G.T0}")
    e(f"v_lshrrev_b32 v{G.T2}, 1, v{G.T1}")
    e(f"v_lshl_add_u32 v{G.QST}, v{G.T2}, 8, v{G.QST}")
    e(f"v_and_b32 v{G.T2}, 1, v{G.T1}")
    e(f"v_lshl_add_u32 v{G.QST}, v{G.T2}, 3, v{G.QST}")
    e(f"v_lshlrev_b32 v{G.W0}, 9, v{G.T1}")
    e(f"v_bfe_u32 v{G.T0}, v0, 2, 2")
    e(f"v_lshl_add_u32 v{G.W0}, v{G.T0}, 6, v{G.W0}")
    e(f"v_and_b32 v{G.T0}, 3, v0")
    e(f"v_lshl_add_u32 v{G.W0}, v{G.T0}, 3, v{G.W0}")
    e(f"v_lshl_add_u32 v{G.W0}, v{G.T2}, 5, v{G.W0}")
    e(f"v_xor_b32 v{G.W1}, 32, v{G.W0}")
    e(f"v_add_u32 v{G.W0}, s{G.cW}, v{G.W0}")
    e(f"v_add_u32 v{G.W1}, s{G.cW}, v{G.W1}")
    e(f"s_lshl_b32 s{G.sT}, s{sW}, 2")
    e(f"s_add_u32 s{G.sT}, s{G.sT}, {LDS_FL+16}")
    e(f"v_mov_b32 v{G.FLW}, s{G.sT}")
    e(f"v_lshlrev_b32 v{G.FLR}, 2, v{G.T0}")
    e(f"v_add_u32 v{G.FLR}, {LDS_FL+16}, v{G.FLR}")
    e(f"v_mov_b32 v{G.EP}, s{G.sF}")
    e(f"s_lshr_b32 s{G.sT2}, s{sW}, 1")
    e(f"s_mul_i32 s{G.sQOFF}, s{G.sT2}, 36864")
    e(f"s_add_u32 s{G.sQOFF}, s{G.sQOFF}, {LDS_R1}")
    e(f"s_and_b32 s{G.sT}, s{sW}, 1")
    e(f"s_lshl_b32 s{G.sT}, s{G.sT}, 11")
    e(f"v_add_u32 v{G.QST}, s{G.sT}, v{G.QST}")
    e(f"s_mov_b32 s{G.sSC}, {f32(math.log2(math.e) / math.sqrt(128.0))}")
    e(f"v_add_u32 v{G.XRD}, s{G.sXR}, v{G.LIN16}")
    for i in range(144):
        e(f"v_mov_b32 v{G.ACC+i}, 0")
    ts(e, G.T0, G.T1)
    e.wait_vm(lambda t: t in (("x", 1), ("w", 0)))
    ts(e, G.T0, G.T1)
    g_arrive(e)
    for x in g_reads_A(0):
        e(x, ("a", 0))
    flag_wait(e, G.FL, G.FLR, G.sF, 0, sleep=0)
    for i in range(9):
        e(g_read_B(i), ("b", 0, i))
    run(g_dma_w_items(0, ("w", 2)))
    run(g_dma_x_items(("x", 3)))
    e("s_waitcnt lgkmcnt(0)")
    e.fence()
    e(f"s_mov_b32 s{G.sCNT}, 9")
    e.raw(".p2align 6")
    e.label("L_G_loop")
    vm0 = [("w", 1)] * 4 + [("x", 2)] * 3 + [("w", 2)] * 4 + [("x", 3)] * 3
    e.vm = list(vm0)
    e.lg = [("a", 0)] * 8 + [("b", 0, i) for i in range(9)]
    g_step(e, 0, ool)
    assert e.vm == vm0, e.vm
    g_step(e, 1, ool)
    assert e.vm == vm0, e.vm
    e(f"s_sub_u32 s{G.sCNT}, s{G.sCNT}, 1")
    e(f"s_cmp_lg_u32 s{G.sCNT}, 0")
    e.branch("s_cbranch_scc1 L_G_loop")
    ts(e, G.T0, G.T1, True)
    e("s_waitcnt vmcnt(0) lgkmcnt(0)")
    e.vm, e.lg = [], []
    g_arrive(e)
    e(f"v_add_u32 v{G.T0}, s{G.sQOFF}, v{G.QST}")
    e(f"s_lshr_b32 s{G.sT2}, s{sW}, 1")
    e(f"s_add_u32 s{G.sT2}, s{G.sT2}, s{G.sTASK}")
    e(f"s_cmp_eq_u32 s{G.sT2}, 1")
    e(f"s_cselect_b32 s{G.sT}, {LDS_QT1}, s{G.sQOFF}")
    e(f"v_add_u32 v{G.T1}, s{G.sT}, v{G.QST}")
    e(f"s_cmp_eq_u32 s{G.sT2}, 2")
    e(f"s_cselect_b32 s{G.sT}, {LDS_QT2-8192}, s{G.sQOFF}")
    e(f"v_add_u32 v{G.T2}, s{G.sT}, v{G.QST}")

    def qpack(i, j):
        d = G.ACC + 16 * i + 4 * j
        for k in range(4):
            e(f"v_mul_f32 v{d+k}, s{G.sSC}, v{d+k}")
        e(f"v_cvt_pk_bf16_f32 v{d}, v{d}, v{d+1}")
        e(f"v_cvt_pk_bf16_f32 v{d+1}, v{d+2}, v{d+3}")

    def qwrite(i, j):
        d = G.ACC + 16 * i + 4 * j
        b = G.T1 if i < 2 else (G.T2 if i < 4 else G.T0)
        e(f"ds_write_b64 v{b}, {vr(d,2)} offset:{4096*i + 512*j}")
    tl = [(i, j) for i in range(9) for j in range(4)]
    for t in tl[:6]:
        qpack(*t)
    flag_wait(e, G.FL, G.FLR, G.sF, 0, sleep=0)
    for n, t in enumerate(tl):
        qwrite(*t)
        if n + 6 < len(tl):
            qpack(*tl[n + 6])
    e(f"s_add_u32 s{G.sTASK}, s{G.sTASK}, 2")
    e(f"v_mov_b32 v{G.T0}, s{G.sTASK}")
    e("s_waitcnt lgkmcnt(0)")
    e.lg = []
    e(f"ds_write_b32 v{G.FLW}, v{G.T0} offset:16")
    ts(e, G.T0, G.T1)
    e(f"s_lshr_b32 s{G.sT2}, s{G.sTASK}, 1")
    flag_wait(e, G.FL, G.FLR, G.sT2, 32, sleep=1)
    e(f"s_lshl_b32 s{G.sWq}, s{sJ}, 10")
    e(f"s_lshl_b32 s{G.sT}, s{sW}, 7")
    e(f"s_add_u32 s{G.sWq}, s{G.sWq}, s{G.sT}")
    e(f"s_add_u32 s{G.sWq}, s{G.sWq}, 512")
    e(f"s_cmp_lt_u32 s{G.sTASK}, 4")
    e.branch("s_cbranch_scc1 L_G_task")

    tiles = o_tiles()
    acc = {t: G.OACC + 4 * k for k, t in enumerate(tiles)}
    e(f"s_lshr_b32 s{G.sP}, s{sJ}, 1")
    e(f"s_and_b32 s{G.sE}, s{sJ}, 1")
    e(f"v_lshlrev_b32 v{G.T0}, 4, v0")
    e(f"s_lshl_b32 s{G.sT}, s{G.sE}, 12")
    e(f"v_add_u32 v{G.LB1}, s{G.sT}, v{G.T0}")
    e(f"v_add_u32 v{G.LB1b}, 4096, v{G.LB1}")
    e(f"s_cmp_eq_u32 s{G.sE}, 0")
    e(f"s_cselect_b32 s{G.sT}, 5120, 0")
    e(f"v_add_u32 v{G.LB2}, s{G.sT}, v{G.T0}")
    e(f"v_lshrrev_b32 v{G.T1}, 4, v0")
    e(f"v_lshrrev_b32 v{G.T0}, 2, v0")
    e(f"v_mul_u32_u24 v{G.ODMA}, 1152, v{G.T0}")
    e(f"v_lshrrev_b32 v{G.T2}, 1, v0")
    e(f"v_xor_b32 v{G.T2}, v{G.T2}, v{G.T1}")
    e(f"v_and_b32 v{G.T2}, 1, v{G.T2}")
    e(f"v_lshl_add_u32 v{G.ODMA}, v{G.T2}, 5, v{G.ODMA}")
    e(f"v_and_b32 v{G.T2}, 1, v0")
    e(f"v_lshl_add_u32 v{G.ODMA}, v{G.T2}, 4, v{G.ODMA}")
    e(f"s_mul_i32 s{G.sT}, s{G.sP}, 288")
    e(f"s_mul_i32 s{G.sT2}, s{G.sE}, 160")
    e(f"s_add_u32 s{G.sT2}, s{G.sT2}, s{G.sT}")
    e(f"v_add_u32 v{G.ODMA}, s{G.sT2}, v{G.ODMA}")
    e(f"v_lshrrev_b32 v{G.ODMA5}, 1, v0")
    e(f"v_mul_u32_u24 v{G.ODMA5}, 1152, v{G.ODMA5}")
    e(f"v_lshl_add_u32 v{G.ODMA5}, v{G.T2}, 4, v{G.ODMA5}")
    e(f"s_add_u32 s{G.sT}, s{G.sT}, 128")
    e(f"v_add_u32 v{G.ODMA5}, s{G.sT}, v{G.ODMA5}")
    e(f"s_mul_i32 s{G.sLB}, s{sW}, 11264")
    e(f"s_add_u32 s{G.sLB}, s{G.sLB}, {LDS_OST}")
    e(f"v_lshlrev_b32 v{G.O0}, 6, v{G.T0}")
    e(f"v_and_b32 v{G.T2}, 3, v0")
    e(f"v_lshl_add_u32 v{G.O0}, v{G.T2}, 3, v{G.O0}")
    e(f"v_and_b32 v{G.T2}, 1, v{G.T1}")
    e(f"v_lshl_add_u32 v{G.O0}, v{G.T2}, 5, v{G.O0}")
    e(f"v_xor_b32 v{G.O1}, 32, v{G.O0}")
    e(f"v_add_u32 v{G.O0}, s{G.sLB}, v{G.O0}")
    e(f"v_add_u32 v{G.O1}, s{G.sLB}, v{G.O1}")
    e(f"v_lshlrev_b32 v{G.O5}, 3, v0")
    e(f"v_add_u32 v{G.O5}, s{G.sLB}, v{G.O5}")
    e(f"s_lshl_b32 s{G.sT}, s{sPAIR}, 2")
    e(f"s_add_u32 s{G.sT}, s{G.sT}, s{sW}")
    e(f"s_mul_i32 s{G.sO}, s{G.sT}, {8*36864}")
    e(f"s_mul_i32 s{G.sWo}, s{sW}, {8*147456}")
    e(f"s_and_b32 s{G.sSH}, s{sW}, 1")
    e(f"s_lshl_b32 s{G.sSH}, s{G.sSH}, 4")
    e(f"s_mov_b32 s{G.sTASK}, 0")

    def woff(q):
        g, q = divmod(q, 8)
        return g * 147456 + (q >> 2) * 4 * 147456 + (q & 3) * 36864

    def boff(q):
        return (q >> 2) * 4 * 36864 + (q & 3) * 9216

    def dmaW(q, tag, after=-1):
        b = (q & 1) * OSTB
        I = lambda t, k, tg=None: Item(t, k, after, tag=tg)
        out = [I(f"s_add_u32 s{G.sT}, s{G.sWo}, {woff(q)}", "s")]
        if q >= 8:
            out.append(I(f"s_cmp_eq_u32 s{G.sTASK}, 3\ns_cselect_b32 s{G.sT}, {OOB}, s{G.sT}", "s"))
        out.append(I(f"s_add_u32 s{G.sT3}, s{G.sT}, {16*1152}", "s"))
        for cb in range(2):
            for u in range(2):
                out.append(I(f"s_add_u32 m0, s{G.sLB}, {b + cb*2048 + u*1024 - cb*64}", "s"))
                out.append(I(f"buffer_load_dwordx4 v{G.ODMA}, {sr(S_WO)}, s{G.sT3 if u else G.sT} offen offset:{64*cb} lds", "d", tag))
        out.append(I(f"s_add_u32 m0, s{G.sLB}, {b + 4096}", "s"))
        out.append(I(f"buffer_load_dwordx4 v{G.ODMA5}, {sr(S_WO)}, s{G.sT} offen lds", "d", tag))
        return out

    def loadB(i):
        if i < 4:
            return f"buffer_load_dwordx4 {vr(G.B+4*i)}, v{G.LB1}, {sr(S_WS)}, s{G.sT2} offen offset:{1024*i} sc1"
        if i == 4:
            return f"buffer_load_dwordx4 {vr(G.B+4*i)}, v{G.LB1b}, {sr(S_WS)}, s{G.sT2} offen sc1"
        return f"buffer_load_dwordx4 {vr(G.B+4*i)}, v{G.LB2}, {sr(S_WS)}, s{G.sT2} offen offset:{1024*(i-5)} sc1"

    def readsA(q):
        par = q & 1
        b = par * OSTB
        out = [f"ds_read_b64_tr_b16 {vr(G.AF+20*par+4*j+2*u,2)}, v{G.O1 if j&1 else G.O0} offset:{b + (j>>1)*2048 + u*1024}"
               for j in range(4) for u in range(2)]
        out += [f"ds_read_b64_tr_b16 {vr(G.AF+20*par+16+2*u,2)}, v{G.O5} offset:{b + 4096 + u*512}" for u in range(2)]
        return out

    e.vm, e.lg = [], []
    run(dmaW(0, ("w", 0)))
    run(dmaW(1, ("w", 1)))
    for i in range(164):
        e(f"v_mov_b32 v{G.OACC+i}, 0")
    e.wait_vm(lambda t: t == ("w", 0))
    for x in readsA(0):
        e(x, ("a", 0))
    e("s_waitcnt lgkmcnt(0)")
    e.lg = []
    run(dmaW(2, ("w", 2)))
    e(f"s_lshl_b32 s{G.sT}, s{sPAIR}, 3")
    e(f"s_lshr_b32 s{G.sT2}, s{sW}, 1")
    e(f"s_lshl_b32 s{G.sT2}, s{G.sT2}, 2")
    e(f"s_add_u32 s{G.sT}, s{G.sT}, s{G.sT2}")
    e(f"v_mov_b32 v{G.T2}, s{G.sT}")
    e.fence()
    e.raw(".p2align 6")
    e.label("L_O_task")
    e(f"s_sub_u32 s{sBUD}, s{sBUD}, 1")
    e("s_cbranch_scc1 L_bail")
    e(f"buffer_load_dword v{G.T0}, v{G.T2}, {sr(S_DBG)}, 0 offen sc1")
    e("s_waitcnt vmcnt(0)")
    e.vm = []
    e(f"v_readfirstlane_b32 s{G.sT}, v{G.T0}")
    e(f"s_lshr_b32 s{G.sT}, s{G.sT}, s{G.sSH}")
    e(f"s_and_b32 s{G.sT2}, s{G.sT}, 0xff")
    e(f"s_bfe_u32 s{G.sT}, s{G.sT}, 0x80008")
    e(f"s_min_u32 s{G.sT}, s{G.sT}, s{G.sT2}")
    e(f"s_cmp_gt_u32 s{G.sT}, s{G.sTASK}")
    e("s_cbranch_scc1 L_O_go")
    e("s_sleep 4")
    e("s_branch L_O_task")
    e.label("L_O_go")
    ts(e, G.T0, G.T1, True)
    e(f"s_mov_b32 s{G.sT2}, s{G.sO}")
    for i in range(9):
        e(loadB(i), ("b", 0, i))
    e.lg = [("a", 0)] * 10
    for q in range(8):
        par = q & 1
        M = []
        lastuse = {}
        for i in range(9):
            for n, j in enumerate([j for j in range(5) if (i, j) in acc]):
                pre = None
                if n == 0:
                    def pre(e, i=i, q=q):
                        if i == 0:
                            e.wait_lg(lambda t: t == ("a", q))
                        e.wait_vm(lambda t: t == ("b", q, i))
                M.append((f"v_mfma_f32_16x16x32_bf16 {vr(acc[(i,j)])}, {vr(G.AF+20*par+4*j)}, {vr(G.B+4*i)}, {vr(acc[(i,j)])}", pre))
                lastuse[i] = len(M) - 1
        QB = []
        if q < 7:
            QB.append(Item(f"s_add_u32 s{G.sT2}, s{G.sO}, {boff(q+1)}", "s", -1, 3))
            QB += [Item(loadB(i), "d", lastuse[i], tag=("b", q + 1, i)) for i in range(9)]
        QA = [Item(lambda e, q=q: e.wait_vm(lambda t: t == ("w", q + 1)), "s", 0)]
        QA += [Item(x, "l", 0, tag=("a", q + 1)) for x in readsA(q + 1)]
        QA += [Item(lambda e, q=q: e.wait_lg(lambda t: t == ("a", q + 1)), "s", 18)]
        QA += dmaW(q + 3, ("w", q + 3), 18)
        schedule(e, M, [QB, QA])
    e(f"s_add_u32 s{G.sO}, s{G.sO}, 36864")
    e(f"s_add_u32 s{G.sWo}, s{G.sWo}, 147456")
    e(f"s_add_u32 s{G.sTASK}, s{G.sTASK}, 1")
    ts(e, G.T0, G.T1)
    e(f"s_cmp_lt_u32 s{G.sTASK}, 4")
    e.branch("s_cbranch_scc1 L_O_task")
    e("s_waitcnt vmcnt(0) lgkmcnt(0)")
    e.vm, e.lg = [], []
    g_arrive(e)
    RED, OST, R2_ = G.LB1, G.LB1b, G.LB2
    e(f"v_lshlrev_b32 v{RED}, 4, v0")
    e(f"v_and_b32 v{G.T0}, 15, v0")
    e(f"v_lshrrev_b32 v{G.T1}, 4, v0")
    e(f"v_mul_u32_u24 v{OST}, 2304, v{G.T0}")
    e(f"v_lshl_add_u32 v{OST}, v{G.T1}, 3, v{OST}")
    e(f"s_mul_i32 s{G.sT}, s{sB}, {144*2304}")
    e(f"s_mul_i32 s{G.sT2}, s{sBLK}, 1152")
    e(f"s_add_u32 s{G.sT}, s{G.sT}, s{G.sT2}")
    e(f"s_mul_i32 s{G.sT2}, s{G.sP}, 288")
    e(f"s_add_u32 s{G.sT}, s{G.sT}, s{G.sT2}")
    e(f"v_add_u32 v{OST}, s{G.sT}, v{OST}")
    e(f"s_mul_i32 s{G.sO}, s{G.sE}, {4*16*2304}")
    e(f"s_cmp_eq_u32 s{G.sE}, 0")
    e(f"s_cselect_b32 s{G.sWo}, {5*16*2304}, 0")
    e(f"s_mul_i32 s{G.sCNT}, s{G.sE}, 160")
    e(f"v_add_u32 v{R2_}, 63488, v{RED}")
    flag_wait(e, G.FL, G.FLR, G.sF, 0, sleep=0)
    for w in range(1, 4):
        e(f"s_cmp_eq_u32 s{sW}, {w}")
        e.branch(f"s_cbranch_scc1 L_red{w}")
    NTL = len(tiles)

    def slot(src, k):
        return (src * 31 + len([x for x in range(k) if x % 4 != src])) * 1024

    for w in range(4):
        e.label(f"L_red{w}")
        e.hist = []
        e.lg = []
        e(f"v_add_u32 v{G.T0}, {w*31*1024}, v{RED}")
        for k, t in enumerate(tiles):
            if k % 4 != w:
                e(f"ds_write_b128 v{G.T0}, {vr(acc[t])} offset:{slot(w,k) - w*31*1024}")
        e("s_waitcnt lgkmcnt(0)")
        e.lg = []
        g_arrive(e)
        flag_wait(e, G.FL, G.FLR, G.sF, 0, sleep=0)
        own = [k for k in range(NTL) if k % 4 == w]
        free = [acc[tiles[k]] for k in range(NTL) if k % 4 != w]
        tmp = {}
        n = 0
        for k in own:
            for src in range(4):
                if src == w:
                    continue
                a = slot(src, k)
                r_ = free[n] if n < len(free) else G.B + 4 * (n - len(free))
                tmp[(k, src)] = r_
                n += 1
                if a < 63488:
                    e(f"ds_read_b128 {vr(r_)}, v{RED} offset:{a}", (k, src))
                else:
                    e(f"ds_read_b128 {vr(r_)}, v{R2_} offset:{a-63488}", (k, src))
        for k in own:
            t = tiles[k]
            for src in range(4):
                if src == w:
                    continue
                e.wait_lg(lambda x: x == (k, src))
                for q in range(4):
                    e(f"v_add_f32 v{acc[t]+q}, v{acc[t]+q}, v{tmp[(k,src)]+q}")
            e(f"v_cvt_pk_bf16_f32 v{acc[t]}, v{acc[t]}, v{acc[t]+1}")
            e(f"v_cvt_pk_bf16_f32 v{acc[t]+1}, v{acc[t]+2}, v{acc[t]+3}")
            i, j = t
            if i < 5:
                e(f"s_add_u32 s{G.sT}, s{G.sO}, {i*16*2304}")
            else:
                e(f"s_add_u32 s{G.sT}, s{G.sWo}, {(i-5)*16*2304}")
            if j < 4:
                e(f"s_add_u32 s{G.sT}, s{G.sT}, s{G.sCNT}")
                off = 32 * j
            else:
                off = 128
            e(f"buffer_store_dwordx2 {vr(acc[t],2)}, v{OST}, {sr(S_OUT)}, s{G.sT} offen offset:{off}")
        ts(e, G.T0, G.T1)
        e.branch("s_branch L_bail")
    for f in ool:
        f(e)


def main():
    e = E()
    e.raw(f"; @launch grid=(256,1,1) block=(512,1,1) lds={LDS_TOTAL}")
    e.raw('.amdgcn_target "amdgcn-amd-amdhsa--gfx950"\n.text')
    e.raw(f".globl {NAME}_kernel\n.p2align 8\n.type {NAME}_kernel,@function\n{NAME}_kernel:")
    prologue(e, "L_end")
    e("s_barrier")
    ts_init(e)
    ts(e, 1, 2)
    e(f"s_cmp_lt_u32 s{sWAVE}, 4")
    e.branch("s_cbranch_scc1 L_A")
    gen_G(e)
    e.label("L_A")
    e.hist = []
    gen_A(e)
    e.label("L_bail")
    e("s_waitcnt vmcnt(0) lgkmcnt(0)")
    e.label("L_end")
    e("s_endpgm")
    e.raw('.section .rodata,"a"')
    e.raw(f""".p2align 6
.amdhsa_kernel {NAME}_kernel
  .amdhsa_next_free_vgpr 256
  .amdhsa_next_free_sgpr 102
  .amdhsa_accum_offset 256
  .amdhsa_group_segment_fixed_size 0
  .amdhsa_kernarg_size 104
  .amdhsa_user_sgpr_count 2
  .amdhsa_user_sgpr_kernarg_segment_ptr 1
  .amdhsa_system_sgpr_workgroup_id_x 1
.end_amdhsa_kernel""")
    sys.stdout.write(e.text())
    print(f"instructions: {e.n_ins}, max vgpr {e.maxv}", file=sys.stderr)


if __name__ == "__main__":
    main()
```

```python
import sys, math, struct, os
from emit import E, vr, sr

NAME = "concat_heads__mha_block_cached__gqa_block_cached__near_ridge"
WS_BYTES = 292618240
OWS = 0
NI = 8
NT = NI // 2
NX = 3
XST = 18432
LDS_QT1 = NI * 8192
LDS_ST = LDS_QT1 + 8192
LDS_X = LDS_ST
LDS_W = LDS_ST + NX * XST
LDS_R1 = LDS_ST
LDS_R2 = LDS_R1 + 36864
LDS_QT2 = LDS_R2 + 36864
LDS_FL = LDS_W + 32768
assert LDS_QT2 + 8192 <= LDS_FL
LDS_OST = LDS_QT1
LDS_TOTAL = LDS_FL + 128
assert LDS_TOTAL <= 163840, LDS_TOTAL
THR = 16.0
TS = int(os.environ.get("TS", "0"))
TSOFF = 80000000
EXP = os.environ.get("EXP", "")
KVF = os.environ.get("KVF", "nt")
OOB = 0x40000000
GTHQ = int(os.environ.get("GTHQ", "0"))
GTHO = int(os.environ.get("GTHO", "4"))
FLG = 40000000 // 256 * 256
POLL = os.environ.get("POLL", "sload")
QSTEP = int(os.environ.get("QSTEP", "4"))


def f32(x):
    return "0x%08x" % struct.unpack("<I", struct.pack("<f", x))[0]


S_X, S_K, S_V, S_WQ, S_WO, S_OUT, S_DBG, S_WS = 32, 36, 40, 44, 48, 52, 56, 60
sWAVE, sW, sPAIR, sB, sJ, sBLK = 64, 65, 66, 67, 68, 69
sRET = 88
sBUD = 90
sTS = 91


def prologue(e, endlabel):
    e("s_cmp_ge_u32 s2, 256")
    e(f"s_cbranch_scc1 {endlabel}")
    e("s_load_dwordx16 s[4:19], s[0:1], 0")
    e("s_load_dwordx8 s[20:27], s[0:1], 64")
    e("s_load_dwordx2 s[28:29], s[0:1], 96")
    e("v_lshrrev_b32 v1, 6, v0")
    e(f"v_readfirstlane_b32 s{sWAVE}, v1")
    e("v_and_b32 v0, 63, v0")
    e(f"v_lshlrev_b32 v1, 2, v0")
    e(f"v_and_b32 v1, 127, v1")
    e(f"v_add_u32 v1, {LDS_FL}, v1")
    e("v_mov_b32 v2, 0")
    e("ds_write_b32 v1, v2")
    e(f"s_and_b32 s{sW}, s{sWAVE}, 3")
    e("s_and_b32 s3, s2, 7")
    e("s_lshl_b32 s3, s3, 2")
    e(f"s_lshr_b32 s{sPAIR}, s2, 6")
    e(f"s_add_u32 s{sPAIR}, s{sPAIR}, s3")
    e(f"s_lshr_b32 s{sJ}, s2, 3")
    e(f"s_and_b32 s{sJ}, s{sJ}, 7")
    e(f"s_and_b32 s{sB}, s{sPAIR}, 15")
    e(f"s_lshr_b32 s{sBLK}, s{sPAIR}, 4")
    e(f"s_mov_b32 s{sBUD}, 0x40000")
    for dst, nbytes in ((S_X, 16 * 144 * 576 * 2), (S_K, 1 << 26), (S_V, 1 << 26), (S_WQ, 576 * 4096 * 2),
                        (S_WO, 576 * 4096 * 2), (S_OUT, 16 * 144 * 1152 * 2), (S_DBG, 256), (S_WS, WS_BYTES)):
        e(f"s_mov_b32 s{dst+2}, {nbytes}")
        e(f"s_mov_b32 s{dst+3}, 0x20000")
    e("s_waitcnt lgkmcnt(0)")
    e.lg = []
    e(f"s_cmp_eq_u32 s{sBLK}, 0")
    for dst, a, b in ((S_X, 4, 14), (S_K, 6, 16), (S_V, 8, 18), (S_WQ, 10, 20), (S_WO, 12, 22)):
        e(f"s_cselect_b32 s{dst}, s{a}, s{b}")
        e(f"s_cselect_b32 s{dst+1}, s{a+1}, s{b+1}")
    for dst, src in ((S_OUT, 24), (S_DBG, 26), (S_WS, 28)):
        e(f"s_mov_b32 s{dst}, s{src}")
        e(f"s_and_b32 s{dst+1}, s{src+1}, 0xffff")
    for dst in (S_X, S_K, S_V, S_WQ, S_WO):
        e(f"s_and_b32 s{dst+1}, s{dst+1}, 0xffff")


def ts_init(e):
    if not TS:
        return
    e(f"s_lshl_b32 s{sTS}, s2, 3")
    e(f"s_add_u32 s{sTS}, s{sTS}, s{sWAVE}")
    e(f"s_lshl_b32 s{sTS}, s{sTS}, 11")
    e(f"s_add_u32 s{sTS}, s{sTS}, {TSOFF}")


def ts(e, va, vd, budget=False):
    if TS not in (1, 3):
        return
    e("s_memtime s[4:5]")
    e("s_waitcnt lgkmcnt(0)")
    e(f"v_mov_b32 v{va}, 0")
    e(f"v_mov_b32 v{vd}, s4")
    e(f"buffer_store_dword v{vd}, v{va}, {sr(S_WS)}, s{sTS} offen")
    e.vm.pop()
    e(f"s_add_u32 s{sTS}, s{sTS}, 4")
    if budget:
        e(f"v_mov_b32 v{vd}, s{sBUD if TS == 1 else 96}")
        e(f"buffer_store_dword v{vd}, v{va}, {sr(S_WS)}, s{sTS} offen")
        e.vm.pop()
        e(f"s_add_u32 s{sTS}, s{sTS}, 4")


def flag_check(e, ool, vfl, vaddr, sF, off, tag="fl"):
    e.wait_lg(lambda t: t == tag)
    e(f"v_cmp_gt_u32 vcc, s{sF}, v{vfl}")
    lab = e.newlabel("spin")
    back = e.newlabel("spinb")
    e.branch(f"s_cbranch_vccnz {lab}", fence=False)
    e.label(back)

    def f(e):
        e.label(lab)
        e.hist = []
        e(f"ds_read_b32 v{vfl}, v{vaddr} offset:{off}")
        e(f"s_sub_u32 s{sBUD}, s{sBUD}, 1")
        e("s_cbranch_scc1 L_bail")
        e("s_waitcnt lgkmcnt(0)")
        e(f"v_cmp_gt_u32 vcc, s{sF}, v{vfl}")
        e.branch(f"s_cbranch_vccz {back}", fence=False)
        e.branch(f"s_branch {lab}", fence=False)
    ool.append(f)


def flag_wait(e, vfl, vaddr, sF, off, sleep=2):
    lab = e.newlabel("fw")
    e.label(lab)
    if sleep:
        e(f"s_sleep {sleep}")
    e(f"s_sub_u32 s{sBUD}, s{sBUD}, 1")
    e("s_cbranch_scc1 L_bail")
    e(f"ds_read_b32 v{vfl}, v{vaddr} offset:{off}")
    e("s_waitcnt lgkmcnt(0)")
    e.lg = []
    e(f"v_cmp_gt_u32 vcc, s{sF}, v{vfl}")
    e.branch(f"s_cbranch_vccnz {lab}", fence=False)


COST = dict(s=1, v=1, t=2, l=2, d=3, w=3, b=3)


class Item:
    def __init__(self, do, kind, after=-1, before=10**9, tag=None, cost=None, needs=None, delay=0):
        self.do, self.kind, self.after, self.before, self.tag = do, kind, after, before, tag
        self.cost = cost if cost is not None else COST[kind]
        self.needs, self.delay = needs, delay
        self.at = None

    def ready(self, k):
        if self.after > k:
            return False
        if self.needs is not None:
            return self.needs.at is not None and self.needs.at + self.delay <= k
        return True

    def emit(self, e, k=10**6):
        assert self.needs is None or self.needs.at is not None, ("unmet dependency", self.do)
        self.at = k
        if self.kind == "d" and e.throttle and len(e.vm) >= e.throttle:
            n = e.throttle - 1
            e(f"s_waitcnt vmcnt({n})")
            e.vm = e.vm[len(e.vm) - n:] if n else []
        if callable(self.do):
            self.do(e)
        else:
            e(self.do, self.tag)


ASLOTS = int(os.environ.get('ASLOTS', '5'))


def schedule(e, mfmas, queues, NSL=3):
    def force(it, k):
        if it.at is not None:
            return
        for q in queues:
            if it in q:
                while True:
                    x = q[0]
                    if x.needs is not None:
                        force(x.needs, k)
                    q.pop(0)
                    x.emit(e, k)
                    if x is it:
                        return

    for k, (txt, pre) in enumerate(mfmas):
        for q in queues:
            for it in [x for x in q if x.before <= k]:
                force(it, k - 1)
        if pre:
            pre(e)
        e(txt)
        slot = 0
        valu_seen = False
        progress = True
        while slot < NSL and progress:
            progress = False
            cand = None
            for q in queues:
                if q and q[0].ready(k) and q[0].kind in "ldwb" and not valu_seen and (slot == 0 or slot + q[0].cost <= NSL):
                    cand = q
                    break
            if cand is None and slot == 0:
                for q in queues:
                    if q and q[0].ready(k) and q[0].kind == "s":
                        cand = q
                        break
                if cand is None:
                    slot = 1
            if cand is None:
                for q in queues:
                    if q and q[0].ready(k) and q[0].kind in "vt" and (slot + q[0].cost <= NSL or slot <= 1):
                        cand = q
                        break
            if cand is None:
                for q in queues:
                    if q and q[0].ready(k) and q[0].kind == "s":
                        cand = q
                        break
            if cand is not None:
                it = cand.pop(0)
                it.emit(e, k)
                slot += it.cost
                if it.kind in "vt":
                    valu_seen = True
                progress = True
    for q in queues:
        while q:
            force(q[0], len(mfmas))


class A:
    LIN16, DMA, KR0, KR1, VR0, VR1, VR2, VR3, FLW, FLR, EP, FL, MX, T0, T1, T2 = range(1, 17)
    L = 17
    C = 20
    S = 32
    FP = 56
    Q = 104
    O = 152
    sF, sRD, sWR, sG, sTHR, sFLOOR, cK1, cK2, cV1, cV2, sSTEP, sGEN, sT2, sOOFF, sLEFT, sT, sDL, sPH = range(70, 88)


NSTEADY = 2 * (NI - 3)
NOST = 8


def a_dma_items(kind, after):
    it = []
    if kind == "k":
        it.append(Item(f"s_add_u32 m0, s{A.sWR}, s{A.cK1}", "s", after))
        it.append(Item(f"buffer_load_dwordx4 v{A.DMA}, {sr(S_K)}, s{A.sG} offen {KVF} lds", "d", after))
        it.append(Item(f"s_add_u32 m0, s{A.sWR}, s{A.cK2}", "s", after))
        it.append(Item(f"buffer_load_dwordx4 v{A.DMA}, {sr(S_K)}, s{A.sG} offen offset:128 {KVF} lds", "d", after))
    else:
        it.append(Item(f"s_add_u32 m0, s{A.sWR}, s{A.cV1}", "s", after))
        it.append(Item(f"buffer_load_dwordx4 v{A.DMA}, {sr(S_V)}, s{A.sG} offen {KVF} lds", "d", after))
        it.append(Item(f"s_add_u32 m0, s{A.sWR}, s{A.cV2}", "s", after))
        it.append(Item(f"buffer_load_dwordx4 v{A.DMA}, {sr(S_V)}, s{A.sG} offen offset:128 {KVF} lds", "d", after))
        it.append(Item(f"s_add_u32 s{A.sG}, s{A.sG}, 8192", "s", after))
        it.append(Item(f"s_sub_u32 s{A.sLEFT}, s{A.sLEFT}, 1\ns_cselect_b32 s{A.sG}, {OOB}, s{A.sG}", "s", after))
        it.append(Item(f"s_add_u32 s{A.sWR}, s{A.sWR}, 16384", "s", after))
        it.append(Item(f"s_and_b32 s{A.sWR}, s{A.sWR}, {NT*16384-1}", "s", after))
    return it


def a_kread(dst, i):
    u, s_ = i >> 2, i & 3
    return f"ds_read_b128 {vr(dst)}, v{A.KR1 if s_&1 else A.KR0} offset:{(s_>>1)*4096 + u*2048}"


def a_qread(e, sbase, d01, d8):
    e(f"v_add_u32 v{A.T2}, s{sbase}, v{A.LIN16}")
    for s_ in range(4):
        e(f"ds_read_b128 {vr(d8+4*s_)}, v{A.T2} offset:{32768+1024*s_}")
    e(f"s_lshl_b32 s{A.sT2}, s{sW}, 13")
    e(f"v_add_u32 v{A.T2}, s{A.sT2}, v{A.T2}")
    for i in range(8):
        e(f"ds_read_b128 {vr(d01+4*i)}, v{A.T2} offset:{1024*i}")


def a_flagstore(e, val):
    e(f"s_lshl_b32 s{A.sT}, s{sPAIR}, 3")
    e(f"s_add_u32 s{A.sT}, s{A.sT}, s{sJ}")
    e(f"s_lshl_b32 s{A.sT}, s{A.sT}, 8")
    e(f"s_add_u32 s{A.sT}, s{A.sT}, {FLG}")
    e(f"v_mov_b32 v{A.T0}, s{A.sT}")
    e(f"v_mov_b32 v{A.T1}, {val}")
    e("s_mov_b64 exec, 1")
    e(f"buffer_store_dword v{A.T1}, v{A.T0}, {sr(S_WS)}, 0 offen sc1")
    e.vm.pop()
    e("s_mov_b64 exec, -1")


def a_signal(e):
    a_flagstore(e, f"s{A.sGEN}")
    e(f"ds_write_b32 v{A.FLW}, v{A.T1} offset:64")


def a_flaginit(e):
    a_flagstore(e, "0")
    e("s_waitcnt vmcnt(0)")
    e(f"s_lshl_b32 s{A.sT}, s{sPAIR}, 3")
    e(f"v_mov_b32 v{A.T0}, s{A.sT}")
    e(f"v_mov_b32 v{A.T1}, 1")
    e("s_mov_b64 exec, 1")
    e(f"buffer_atomic_add v{A.T1}, v{A.T0}, {sr(S_DBG)}, 0 offen sc1")
    e.vm.pop()
    e("s_mov_b64 exec, -1")


def a_qstep_work(e, R, ool):
    skip = e.newlabel("qskip")
    nosig = e.newlabel("nosig")
    e(f"s_cmp_eq_u32 s{A.sGEN}, 0")
    e(f"s_cbranch_scc1 {skip}")
    e(f"s_cmp_lg_u32 s{sW}, 0")
    e(f"s_cbranch_scc1 {nosig}")
    a_signal(e)
    e.label(nosig)
    e(f"s_cmp_eq_u32 s{A.sGEN}, 3")
    e(f"s_cbranch_scc1 {skip}")
    e(f"s_mov_b32 s{A.sT}, 4")
    flag_wait(e, A.FL, A.FLR, A.sT, 32, sleep=0)
    if R == 2:
        e(f"s_cmp_eq_u32 s{A.sGEN}, 1")
        e(f"s_mov_b32 s{A.sT}, {LDS_R2}")
        e(f"s_cselect_b32 s{A.sT}, {LDS_R1}, s{A.sT}")
        a_qread(e, A.sT, A.O + 64, A.Q + 32)
        e("s_waitcnt lgkmcnt(0)")
    e(f"s_add_u32 s{A.sT}, s{A.sGEN}, 1")
    e(f"v_mov_b32 v{A.T0}, s{A.sT}")
    e(f"ds_write_b32 v{A.FLW}, v{A.T0} offset:48")
    e.label(skip)


sCR, sCF, sCS = 92, 98, 100


def a_spin(e):
    flag_wait(e, A.FL, A.FLR, A.sF, 0, sleep=0)


def a_step(e, R, p, ool):
    nextp = (p + 1) % 3
    Gr = lambda k: A.FP + 16 * (k % 3)
    K = [Gr(p) + 4 * i for i in range(4)] + [Gr(p + 1) + 4 * i for i in range(4)]
    V = [Gr(p + 2) + 4 * i for i in range(4)] + [Gr(p) + 4 * i for i in range(4)]
    Kn = [Gr(nextp) + 4 * i for i in range(4)] + [Gr(nextp + 1) + 4 * i for i in range(4)]
    base = 8 * R
    lastqk = 8 * (R - 1)
    lastpv = base + 8 * (R - 1)
    end = 2 * base
    wl = lambda tag: (lambda e: e.wait_lg(lambda t: t == tag))
    M = []
    for r in range(R):
        for idx in range(8):
            u, s = idx >> 2, idx & 3
            d = A.S + 8 * r + 4 * u
            c = vr(A.C + 4 * r) if s == 0 else vr(d)
            pre = None
            if r == 0:
                pre = wl(("k", 3)) if idx == 0 else (wl(("k", idx + 1)) if idx in (4, 6) else None)
            M.append((f"v_mfma_f32_16x16x32_bf16 {vr(d)}, {vr(K[idx])}, {vr(A.Q+16*r+4*s)}, {c}", pre))
    for r in range(R):
        for T in range(8):
            o = A.O + 32 * r + 4 * T
            pre = None
            if r == 0:
                pre = wl(("v", 3)) if T == 0 else (wl(("v", T + 1)) if T in (4, 6) else None)
            M.append((f"v_mfma_f32_16x16x32_bf16 {vr(o)}, {vr(V[T])}, {vr(A.S+8*r)}, {vr(o)}", pre))

    def flagcmp(e):
        e.wait_lg(lambda t: t == "fl")
        e(f"v_cmp_gt_u32 s[{sCF}:{sCF+1}], s{A.sF}, v{A.FL}")

    QV = []
    QC = []
    QZ = []
    fc0 = Item(flagcmp, "v", base - 1)
    cpc = None
    for r in range(R):
        b = A.S + 8 * r
        e1 = 8 * r + 7 + 2
        need = base + 8 * r
        q = []
        mx = Item(f"v_max3_f32 v{A.MX}, v{b}, v{b+1}, v{b+2}\nv_max3_f32 v{A.MX}, v{A.MX}, v{b+3}, v{b+4}\n"
                  f"v_max3_f32 v{A.MX}, v{A.MX}, v{b+5}, v{b+6}\nv_max_f32 v{A.MX}, v{A.MX}, v{b+7}\n"
                  f"v_cmp_lt_f32 s[{sCR+2*r}:{sCR+2*r+1}], s{A.sTHR}, v{A.MX}", "v", e1, cost=5)
        if r == R - 1:
            QC.append(fc0)
        QC.append(mx)

        def chk(e, r=r):
            lab = e.newlabel("rare")
            back = e.newlabel("rareb")
            if r == R - 1:
                e(f"s_or_b64 s[{sCF}:{sCF+1}], s[{sCF}:{sCF+1}], s[{sCR+2*r}:{sCR+2*r+1}]")
            else:
                e(f"s_cmp_lg_u64 s[{sCR+2*r}:{sCR+2*r+1}], 0")
            e.branch(f"s_cbranch_scc1 {lab}", fence=False)
            e.label(back)

            def f(e):
                e.label(lab)
                e.hist = []
                if r == R - 1:
                    a_spin(e)
                    e(f"s_cmp_eq_u64 s[{sCR+2*r}:{sCR+2*r+1}], 0")
                    e(f"s_cbranch_scc1 {back}")
                e(f"s_call_b64 s[{sRET}:{sRET+1}], L_rare{r}")
                e(f"s_branch {back}")
            ool.append(f)
        ck = Item(chk, "b", e1, needs=mx, delay=2, cost=4)
        QC.append(ck)
        if r == R - 1:
            cpc = ck
        for i in range(8):
            q.append(Item(f"v_exp_f32 v{b+i}, v{b+i}", "t", e1, needs=ck if i == 0 else None))
            if i in (2, 3, 4, 5):
                q.append(Item(f"v_add_f32 v{A.L+r}, v{A.L+r}, v{b+i-2}", "v", e1))
        for i in range(4):
            q.append(Item(f"v_cvt_pk_bf16_f32 v{b+i}, v{b+2*i}, v{b+2*i+1}", "v", e1, need))
        for i in range(4, 8):
            QZ.append(Item(f"v_add_f32 v{A.L+r}, v{A.L+r}, v{b+i}", "v", e1, needs=q[-1]))
        QV.append(q)
    QL = []

    def vread(T, u, after):
        QL.append(Item(f"ds_read_b64_tr_b16 {vr(V[T]+2*u,2)}, v{A.VR0+(T&3)} offset:{8192+(T>>2)*4096+u*2048}", "l", after, base, ("v", T)))

    for T in range(4):
        vread(T, 0, T)
        vread(T, 1, T)
    for T in range(4, 8):
        vread(T, 0, lastqk + T - 4)
        vread(T, 1, lastqk + T - 4)
    fl0 = Item(f"ds_read_b32 v{A.FL}, v{A.FLR}", "l", base - 4, base - 1, tag="fl")
    QL.append(fl0)
    fc0.needs, fc0.delay = fl0, 2
    for i in range(4):
        QL.append(Item(a_kread(Kn[i], i), "l", base, tag=("kn", i), needs=cpc, delay=1))
    for i in range(4, 8):
        QL.append(Item(a_kread(Kn[i], i), "l", lastpv + V.index(Kn[i]), tag=("kn", i)))
    fl1 = Item(f"ds_read_b32 v{A.FL}, v{A.FLR}", "l", end - 6, end - 3, tag="fl")
    QL.append(fl1)
    QS = a_dma_items("v", 3)
    QS.append(Item(f"s_waitcnt vmcnt({NSTEADY})", "s", 7))
    QS.append(Item(f"s_add_u32 s{A.sF}, s{A.sF}, 1", "s", 7))
    QS.append(Item(f"v_add_u32 v{A.EP}, 1, v{A.EP}", "v", 7))
    QS.append(Item(f"ds_write_b32 v{A.FLW}, v{A.EP}", "w", 8, base - 5, tag="flw"))
    QS.append(Item(f"s_add_u32 s{A.sRD}, s{A.sRD}, 16384", "s", 9))
    QS.append(Item(f"s_cmp_eq_u32 s{A.sRD}, {NT*16384}\ns_cselect_b32 s{A.sDL}, s{A.sPH}, 16384\ns_and_b32 s{A.sRD}, s{A.sRD}, {NT*16384-1}", "s", 9, cost=3))
    QS.append(Item(f"v_add_u32 v{A.KR0}, s{A.sDL}, v{A.KR0}", "v", 9))
    QS.append(Item(f"v_add_u32 v{A.KR1}, s{A.sDL}, v{A.KR1}", "v", 9, base))
    kd = a_dma_items("k", base)
    kd[1].needs, kd[1].delay = cpc, 1
    QS += kd
    QS.append(Item(f"s_waitcnt vmcnt({NSTEADY})", "s", base + 7))
    QS.append(Item(f"s_add_u32 s{A.sF}, s{A.sF}, 1", "s", base + 7))
    QS.append(Item(f"v_add_u32 v{A.EP}, 1, v{A.EP}", "v", base + 7))
    QS.append(Item(f"ds_write_b32 v{A.FLW}, v{A.EP}", "w", base + 8, end - 6, tag="flw"))
    for k in range(4):
        QS.append(Item(f"v_add_u32 v{A.VR0+k}, s{A.sDL}, v{A.VR0+k}", "v", base + 9))
    QS.append(Item(f"s_mov_b32 s{A.sTHR}, {f32(THR)}", "s", base + 9))
    QS.append(Item(f"s_mov_b32 s{A.sFLOOR}, 0", "s", base + 9))
    QS.append(Item(f"s_add_u32 s{A.sSTEP}, s{A.sSTEP}, 1", "s", base + 9))
    QS.append(Item(f"s_lshr_b32 s{sCS}, {(1 << 16) | (1 << QSTEP)}, s{A.sSTEP}\ns_and_b32 s{sCS}, s{sCS}, 1", "s", base + 9, cost=2))
    QS.append(Item(flagcmp, "v", end - 3, needs=fl1, delay=2))
    schedule(e, M, [QC, QL, QS] + QV + [QZ], ASLOTS)
    lab = e.newlabel("cpe")
    back = e.newlabel("cpeb")
    e(f"s_or_b64 s[{sCF}:{sCF+1}], s[{sCF}:{sCF+1}], s[{sCS}:{sCS+1}]")
    e.branch(f"s_cbranch_scc1 {lab}", fence=False)
    e.label(back)

    def f(e):
        e.label(lab, full_fence=True)
        a_spin(e)
        e(f"s_cmp_eq_u32 s{A.sSTEP}, 16")
        e(f"s_cbranch_scc1 L_A{R}_epi")
        e(f"s_cmp_lg_u32 s{A.sSTEP}, {QSTEP}")
        e(f"s_cbranch_scc1 {back}")
        e(f"s_call_b64 s[{sRET}:{sRET+1}], L_qwork{R}")
        e(f"s_branch {back}")
    ool.append(f)
    e.lg = [("k", t[1]) if isinstance(t, tuple) and t[0] == "kn" else t for t in e.lg]


def a_rare(e, r):
    e.label(f"L_rare{r}", full_fence=True)
    b = A.S + 8 * r
    e(f"v_max3_f32 v{A.T0}, v{b}, v{b+1}, v{b+2}")
    e(f"v_max3_f32 v{A.T0}, v{A.T0}, v{b+3}, v{b+4}")
    e(f"v_max3_f32 v{A.T0}, v{A.T0}, v{b+5}, v{b+6}")
    e(f"v_max_f32 v{A.T0}, v{A.T0}, v{b+7}")
    e(f"v_mov_b32 v{A.T1}, v{A.T0}")
    e(f"v_permlane32_swap_b32 v{A.T0}, v{A.T1}")
    e(f"v_max_f32 v{A.T0}, v{A.T0}, v{A.T1}")
    e(f"v_mov_b32 v{A.T1}, v{A.T0}")
    e(f"v_permlane16_swap_b32 v{A.T0}, v{A.T1}")
    e(f"v_max_f32 v{A.T0}, v{A.T0}, v{A.T1}")
    e(f"v_max_f32 v{A.T0}, s{A.sFLOOR}, v{A.T0}")
    for i in range(8):
        e(f"v_sub_f32 v{b+i}, v{b+i}, v{A.T0}")
    for i in range(4):
        e(f"v_sub_f32 v{A.C+4*r+i}, v{A.C+4*r+i}, v{A.T0}")
    skip = e.newlabel("rfirst")
    e(f"s_cmp_lg_u32 s{A.sFLOOR}, 0")
    e(f"s_cbranch_scc1 {skip}")
    e(f"v_exp_f32 v{A.T1}, -v{A.T0}")
    e(f"v_mul_f32 v{A.L+r}, v{A.L+r}, v{A.T1}")
    for i in range(32):
        e(f"v_mul_f32 v{A.O+32*r+i}, v{A.O+32*r+i}, v{A.T1}")
    e.label(skip)
    e.fence()
    e("s_nop 1")
    e(f"s_setpc_b64 s[{sRET}:{sRET+1}]")


def a_reset(e):
    for i in range(96):
        e(f"v_mov_b32 v{A.O+i}, 0")
    for i in range(15):
        e(f"v_mov_b32 v{A.L+i}, 0")
    e(f"s_mov_b32 s{A.sTHR}, 0xff800000")
    e(f"s_mov_b32 s{A.sFLOOR}, 0xff800000")
    e(f"s_mov_b32 s{A.sSTEP}, 0")


def a_epilogue(e, R):
    if R == 3:
        e(f"s_cmp_eq_u32 s{A.sGEN}, 0")
        e(f"s_mov_b32 s{A.sT}, {LDS_QT2}")
        e(f"s_cselect_b32 s{A.sT}, {LDS_QT1}, s{A.sT}")
        e(f"s_cmp_eq_u32 s{A.sGEN}, 2")
        e(f"s_cselect_b32 s{A.sT}, {LDS_R2+16384}, s{A.sT}")
        e(f"v_add_u32 v{A.T2}, s{A.sT}, v{A.LIN16}")
        for i in range(8):
            e(f"ds_read_b128 {vr(A.Q+4*i)}, v{A.T2} offset:{1024*i}", "qn")
    for r in range(R):
        e(f"v_mov_b32 v{A.T1}, v{A.L+r}")
        e(f"v_permlane32_swap_b32 v{A.L+r}, v{A.T1}")
        e(f"v_add_f32 v{A.L+r}, v{A.L+r}, v{A.T1}")
        e(f"v_mov_b32 v{A.T1}, v{A.L+r}")
        e(f"v_permlane16_swap_b32 v{A.L+r}, v{A.T1}")
        e(f"v_add_f32 v{A.L+r}, v{A.L+r}, v{A.T1}")
        e(f"v_rcp_f32 v{A.T0}, v{A.L+r}")
        if r < 2:
            e(f"s_lshl_b32 s{A.sT}, s{sW}, 11")
            e(f"s_add_u32 s{A.sT}, s{A.sT}, s{A.sOOFF}")
            if r == 1:
                e(f"s_add_u32 s{A.sT}, s{A.sT}, 1024")
        else:
            e(f"s_add_u32 s{A.sT}, s{A.sOOFF}, 8192")
        for s in range(4):
            o = A.O + 32 * r + 8 * s
            for i in range(8):
                e(f"v_mul_f32 v{o+i}, v{o+i}, v{A.T0}")
            for i in range(4):
                e(f"v_cvt_pk_bf16_f32 v{o+i}, v{o+2*i}, v{o+2*i+1}")
            e(f"buffer_store_dwordx4 {vr(o)}, v{A.LIN16}, {sr(S_WS)}, s{A.sT} offen sc1", "ost")
            if s < 3:
                e(f"s_add_u32 s{A.sT}, s{A.sT}, 9216")
    e(f"s_add_u32 s{A.sOOFF}, s{A.sOOFF}, 36864")


def gen_A(e):
    ool = []
    e("s_setprio 2")
    e(f"v_lshlrev_b32 v{A.LIN16}, 4, v0")
    e(f"v_lshrrev_b32 v{A.T1}, 4, v0")
    e(f"v_lshlrev_b32 v{A.T2}, 1, v{A.T1}")
    e(f"v_and_b32 v{A.T0}, 7, v0")
    e(f"v_xor_b32 v{A.T0}, v{A.T0}, v{A.T2}")
    e(f"v_lshrrev_b32 v{A.T2}, 3, v0")
    e(f"v_lshlrev_b32 v{A.DMA}, 8, v{A.T2}")
    e(f"v_lshl_add_u32 v{A.DMA}, v{A.T0}, 4, v{A.DMA}")
    e(f"v_and_b32 v{A.T0}, 15, v0")
    e(f"v_and_b32 v{A.T2}, 6, v0")
    e(f"v_xor_b32 v{A.T2}, v{A.T2}, v{A.T1}")
    e(f"v_lshlrev_b32 v{A.KR0}, 7, v{A.T0}")
    e(f"v_lshl_add_u32 v{A.KR0}, v{A.T2}, 4, v{A.KR0}")
    e(f"v_xor_b32 v{A.KR1}, 64, v{A.KR0}")
    e(f"v_lshrrev_b32 v{A.T0}, 2, v0")
    e(f"v_lshlrev_b32 v{A.VR0}, 7, v{A.T0}")
    e(f"v_bfe_u32 v{A.T2}, v0, 3, 2")
    e(f"v_lshl_add_u32 v{A.VR0}, v{A.T2}, 5, v{A.VR0}")
    e(f"v_and_b32 v{A.T2}, 3, v0")
    e(f"v_lshl_add_u32 v{A.VR0}, v{A.T2}, 3, v{A.VR0}")
    for k in range(1, 4):
        e(f"v_xor_b32 v{A.VR0+k}, {32*k}, v{A.VR0}")
    e(f"s_lshl_b32 s{A.sT}, s{sW}, 2")
    e(f"s_add_u32 s{A.sT}, s{A.sT}, {LDS_FL}")
    e(f"v_mov_b32 v{A.FLW}, s{A.sT}")
    e(f"v_lshlrev_b32 v{A.FLR}, 2, v{A.T2}")
    e(f"v_add_u32 v{A.FLR}, {LDS_FL}, v{A.FLR}")
    e(f"s_lshl_b32 s{A.cK1}, s{sW}, 10")
    e(f"s_add_u32 s{A.cK2}, s{A.cK1}, {4096-128}")
    e(f"s_add_u32 s{A.cV1}, s{A.cK1}, 8192")
    e(f"s_add_u32 s{A.cV2}, s{A.cK2}, 8192")
    e(f"s_lshl_b32 s{A.sG}, s{sB}, 3")
    e(f"s_add_u32 s{A.sG}, s{A.sG}, s{sJ}")
    e(f"s_lshl_b32 s{A.sG}, s{A.sG}, 19")
    e(f"s_lshl_b32 s{A.sT}, s{sW}, 11")
    e(f"s_add_u32 s{A.sG}, s{A.sG}, s{A.sT}")
    e(f"s_mov_b32 s{A.sPH}, {(-(NT-1)*16384) & 0xffffffff}")
    e(f"s_lshl_b32 s{A.sT}, s{sPAIR}, 3")
    e(f"s_add_u32 s{A.sT}, s{A.sT}, s{sJ}")
    e(f"s_mul_i32 s{A.sOOFF}, s{A.sT}, {4*36864}")
    e(f"s_mov_b32 s{A.sRD}, 0")
    e(f"s_mov_b32 s{A.sWR}, 0")
    e(f"s_mov_b32 s{A.sGEN}, 0")
    e(f"s_mov_b32 s{A.sLEFT}, 63")
    e(f"s_mov_b32 s{sCS+1}, 0")
    e(f"s_mov_b32 s{A.sT}, 1")
    flag_wait(e, A.FL, A.FLR, A.sT, 16, sleep=1)
    for t in range(NT):
        for it in a_dma_items("k", 0):
            it.emit(e)
        if t < NT - 1:
            for it in a_dma_items("v", 0):
                it.emit(e)
    a_reset(e)
    lab = e.newlabel("noinit")
    e(f"s_cmp_lg_u32 s{sW}, 0")
    e(f"s_cbranch_scc1 {lab}")
    a_flaginit(e)
    e.label(lab)
    e(f"s_mov_b32 s{A.sT}, 2")
    flag_wait(e, A.FL, A.FLR, A.sT, 32)
    ts(e, A.T0, A.T1, True)
    e(f"s_mov_b32 s{A.sT}, {LDS_R1}")
    a_qread(e, A.sT, A.Q, A.Q + 32)
    lab = e.newlabel("q1skip")
    e(f"s_cmp_eq_u32 s{sW}, 0")
    e(f"s_cbranch_scc1 {lab}")
    e(f"s_mov_b32 s{A.sT}, {LDS_R2}")
    a_qread(e, A.sT, A.O + 64, A.Q + 32)
    e.label(lab)
    e("s_waitcnt vmcnt(0) lgkmcnt(0)")
    e.lg, e.vm = [], []
    e(f"s_mov_b32 s{A.sF}, 1")
    e(f"v_mov_b32 v{A.EP}, 1")
    e(f"ds_write_b32 v{A.FLW}, v{A.EP} offset:48")
    e(f"ds_write_b32 v{A.FLW}, v{A.EP}", "flw")
    flag_wait(e, A.FL, A.FLR, A.sF, 0, sleep=0)
    for i in range(8):
        e(a_kread(A.FP + 4 * i, i), ("k", i))
    e("s_waitcnt lgkmcnt(0)")
    e(f"s_cmp_eq_u32 s{sW}, 0")
    e.branch("s_cbranch_scc1 L_A3_0")
    for R in (2, 3):
        e.raw(".p2align 6")
        for p in range(3):
            e.label(f"L_A{R}_{p}")
            if p == 0:
                e.hist = []
            e.lg = [("k", i) for i in range(8)]
            a_step(e, R, p, ool)
        e.branch(f"s_branch L_A{R}_0")
        e.label(f"L_A{R}_epi", full_fence=True)
        ts(e, A.T0, A.T1, True)
        a_epilogue(e, R)
        e(f"s_add_u32 s{A.sGEN}, s{A.sGEN}, 1")
        e(f"s_cmp_eq_u32 s{A.sGEN}, 4")
        e.branch("s_cbranch_scc1 L_A_end")
        if R == 2:
            for i in range(32):
                e(f"v_mov_b32 v{A.Q+i}, v{A.O+64+i}")
        a_reset(e)
        e("s_waitcnt lgkmcnt(0)")
        ts(e, A.T0, A.T1)
        e.fence()
        if R == 2:
            for g in (1, 2, 3):
                nx = e.newlabel("nx")
                e(f"s_cmp_lg_u32 s{A.sGEN}, {g}")
                e(f"s_cbranch_scc1 {nx}")
                e(f"s_cmp_eq_u32 s{sW}, {g}")
                e(f"s_cbranch_scc1 L_A3_{g%3}")
                e(f"s_branch L_A2_{g%3}")
                e.label(nx)
        else:
            for g in (1, 2):
                e(f"s_cmp_eq_u32 s{A.sGEN}, {g}")
                e(f"s_cbranch_scc1 L_A2_{g%3}")
            e(f"s_branch L_A2_0")
    e.label("L_A_end")
    e.hist = []
    e("s_waitcnt vmcnt(0) lgkmcnt(0)")
    e(f"s_add_u32 s{A.sF}, s{A.sF}, 1")
    e(f"v_add_u32 v{A.EP}, 1, v{A.EP}")
    e(f"ds_write_b32 v{A.FLW}, v{A.EP}")
    ts(e, A.T0, A.T1)
    e(f"s_cmp_lg_u32 s{sW}, 0")
    e("s_cbranch_scc1 L_bail")
    flag_wait(e, A.FL, A.FLR, A.sF, 0, sleep=0)
    e.vm = []
    a_signal(e)
    e.branch("s_branch L_bail")
    k = 0
    while k < len(ool):
        ool[k](e)
        k += 1
    for r in range(3):
        a_rare(e, r)
    for R in (2, 3):
        e.label(f"L_qwork{R}", full_fence=True)
        e.lg = []
        a_qstep_work(e, R, ool)
        e.fence()
        e(f"s_setpc_b64 s[{sRET}:{sRET+1}]")


class G:
    T0, T1, T2 = 1, 2, 3
    FLW, FLR, EP, FL = 4, 5, 6, 7
    XDMA, WD0, WD1, WB, XR0, XR1, QST, XB0 = 8, 9, 10, 11, 15, 16, 17, 18
    B = 20
    AF = 56
    ACC = 88
    LB1, LB1b, LB2, ODMA, ODMA5, OB, O5 = 4, 5, 6, 7, 8, 9, 13
    OBF = 16
    OAF = 52
    OACC = 92
    sF, sX, sWq, sTASK, sQOFF, sT, sT2, sSC, sXB, sXW, sXR, sKX, sCNT, cX, cW, sT3 = range(70, 86)
    sEX = 86
    sNX, sNW, sW0, sWE, sR0 = 92, 93, 94, 95, 96
    sTB = 6
    sO, sWo, sLB, sE, sP, sSH = 71, 72, 74, 77, 78, 79


def g_dma_x_items(tag, after=-1):
    I = lambda t, k, tg=None: Item(t, k, after, tag=tg)
    out = [I(f"s_add_u32 m0, s{G.sXW}, s{G.cX}", "s"), I(f"s_add_u32 s{G.sT}, s{G.sX}, s{G.sKX}", "s")]
    for k in range(4):
        if k:
            out.append(I(f"s_add_u32 m0, m0, 1024", "s"))
            out.append(I(f"s_add_u32 s{G.sT}, s{G.sT}, {8*1152}", "s"))
        out.append(I(f"buffer_load_dwordx4 v{G.XDMA}, {sr(S_X)}, s{G.sT} offen lds", "d", tag))
    out += [
        I(f"s_add_u32 m0, s{G.sXW}, s{G.sT2}", "s"),
        I(f"s_add_u32 s{G.sT}, s{G.sXB}, s{G.sKX}", "s"),
        I(f"s_mov_b64 exec, s[{G.sEX}:{G.sEX+1}]\nbuffer_load_dwordx4 v{G.XDMA}, {sr(S_X)}, s{G.sT} offen lds\ns_mov_b64 exec, -1", "d", tag),
        I(f"s_add_u32 s{G.sKX}, s{G.sKX}, 128", "s"),
        I(f"s_cmp_eq_u32 s{G.sKX}, {9*128}\ns_cselect_b32 s{G.sKX}, 0, s{G.sKX}", "s"),
        I(f"s_sub_u32 s{G.sNX}, s{G.sNX}, 1\ns_cselect_b32 s{G.sKX}, {OOB}, s{G.sKX}", "s"),
        I(f"s_add_u32 s{G.sXW}, s{G.sXW}, {XST}", "s"),
        I(f"s_cmp_eq_u32 s{G.sXW}, {LDS_X + NX*XST}\ns_cselect_b32 s{G.sXW}, {LDS_X}, s{G.sXW}", "s"),
    ]
    return out


def g_dma_w_items(par, tag, after=-1):
    I = lambda t, k, tg=None: Item(t, k, after, tag=tg)
    out = []
    for rg in range(4):
        out.append(I(f"s_add_u32 m0, s{G.cW}, {par*4096 + rg*1024}", "s"))
        out.append(I(f"buffer_load_dwordx4 v{G.WD1 if rg&1 else G.WD0}, {sr(S_WQ)}, s{G.sWq} offen lds", "d", tag))
        out.append(I(f"s_add_u32 s{G.sWq}, s{G.sWq}, {8*8192}", "s"))
    out.append(I(f"s_cmp_eq_u32 s{G.sWq}, s{G.sWE}\ns_cselect_b32 s{G.sWq}, s{G.sW0}, s{G.sWq}", "s"))
    out.append(I(f"s_sub_u32 s{G.sNW}, s{G.sNW}, 1\ns_cselect_b32 s{G.sWq}, {OOB}, s{G.sWq}", "s"))
    return out


def g_reads_A(par):
    return [f"ds_read_b64_tr_b16 {vr(G.AF + 16*par + 4*j + 2*hh, 2)}, v{G.WB+j} offset:{par*4096 + hh*512}"
            for j in range(4) for hh in range(2)]


def g_read_B(i, s1):
    return f"ds_read_b128 {vr(G.B+4*i)}, v{G.XR1 if s1 else G.XR0} offset:{i*2048}"


def g_arrive(e):
    e(f"s_add_u32 s{G.sF}, s{G.sF}, 1")
    e(f"v_add_u32 v{G.EP}, 1, v{G.EP}")
    e(f"ds_write_b32 v{G.FLW}, v{G.EP}", "flw")


def g_step(e, par, ool):
    M = []
    for i in range(9):
        for j in range(4):
            d = G.ACC + 16 * i + 4 * j
            pre = None
            if j == 0:
                pre = (lambda e, i=i: e.wait_lg(lambda t: t == ("a", 0) or t == ("b", 0, i)))
            M.append((f"v_mfma_f32_16x16x32_bf16 {vr(d)}, {vr(G.AF + 16*par + 4*j)}, {vr(G.B+4*i)}, {vr(d)}", pre))
    QB = []
    if par == 1:
        QB += [Item(f"s_add_u32 s{G.sXR}, s{G.sXR}, {XST}", "s", -1, 3),
               Item(f"s_cmp_eq_u32 s{G.sXR}, {LDS_X + NX*XST}\ns_cselect_b32 s{G.sXR}, {LDS_X}, s{G.sXR}", "s", -1, 3),
               Item(f"v_add_u32 v{G.XR0}, s{G.sXR}, v{G.XB0}", "v", -1, 3),
               Item(f"v_xor_b32 v{G.XR1}, 64, v{G.XR0}", "v", -1, 3)]
    QB += [Item(g_read_B(i, par ^ 1), "l", 4 * i + 3, tag=("b", 1, i)) for i in range(9)]
    QA = [Item(lambda e: e.wait_vm(lambda t: t == ("w", 1)), "s", 0)]
    QA += [Item(x, "l", 0, tag=("a", 1)) for x in g_reads_A(par ^ 1)]
    QA += [Item(lambda e: e.wait_lg(lambda t: t == ("a", 1)), "s", 14)]
    QA += g_dma_w_items(par ^ 1, ("w", 3), 14)
    if par == 1:
        w0 = Item(lambda e: e.wait_lg(lambda t: isinstance(t, tuple) and t[0] == "b" and t[1] == 0), "s", 5)
    else:
        w0 = Item(lambda e: e.wait_vm(lambda t: t == ("x", 1)), "s", 5)
    QS = [w0,
          Item(f"s_add_u32 s{G.sF}, s{G.sF}, 1", "s", 5),
          Item(f"v_add_u32 v{G.EP}, 1, v{G.EP}", "v", 5),
          Item(f"ds_write_b32 v{G.FLW}, v{G.EP}", "w", 6, 12, tag="flw"),
          Item(f"ds_read_b32 v{G.FL}, v{G.FLR}", "l", 21 if par else 28, 24 if par else 31, tag="fl")]
    QA += [Item(lambda e: flag_check(e, ool, G.FL, G.FLR, G.sF, 0), "t", 24 if par else 32)]
    if par == 1:
        QA += g_dma_x_items(("x", 3), 24)
    schedule(e, M, [QS, QB, QA])

    def dec(t):
        if not isinstance(t, tuple):
            return t
        if t[0] == "x" and par == 0:
            return t
        return (t[0], t[1] - 1) + tuple(t[2:])
    e.vm = [dec(t) for t in e.vm]
    e.lg = [dec(t) for t in e.lg]


def o_tiles():
    return [(i, j) for i in range(9) for j in range(5) if j < 4 or i < 5]


OSTB = 5120


def gen_G(e):
    ool = []
    e(f"v_lshrrev_b32 v{G.T1}, 4, v0")
    e(f"v_and_b32 v{G.T0}, 7, v0")
    e(f"v_lshrrev_b32 v{G.T2}, 3, v0")
    e(f"v_lshlrev_b32 v{G.FL}, 1, v{G.T1}")
    e(f"v_xor_b32 v{G.FL}, v{G.FL}, v{G.T0}")
    e(f"v_mul_u32_u24 v{G.XDMA}, 1152, v{G.T2}")
    e(f"v_lshl_add_u32 v{G.XDMA}, v{G.FL}, 4, v{G.XDMA}")
    e(f"v_and_b32 v{G.FL}, 1, v{G.T1}")
    e(f"v_lshlrev_b32 v{G.FL}, 1, v{G.FL}")
    e(f"v_xor_b32 v{G.FL}, v{G.FL}, v{G.T0}")
    e(f"v_lshlrev_b32 v{G.WD0}, 13, v{G.T2}")
    e(f"v_lshl_add_u32 v{G.WD0}, v{G.FL}, 4, v{G.WD0}")
    e(f"v_xor_b32 v{G.WD1}, 64, v{G.WD0}")
    e(f"s_lshl_b32 s{G.cW}, s{sW}, 13")
    e(f"s_add_u32 s{G.cW}, s{G.cW}, {LDS_W}")
    e(f"s_mul_i32 s{G.sXB}, s{sB}, 165888")
    e(f"s_mul_i32 s{G.sX}, s{sW}, {32*1152}")
    e(f"s_add_u32 s{G.sX}, s{G.sX}, s{G.sXB}")
    e(f"s_lshr_b32 s{G.sT}, s{sW}, 1")
    e(f"s_mul_i32 s{G.sT}, s{G.sT}, {8*1152}")
    e(f"s_add_u32 s{G.sXB}, s{G.sXB}, s{G.sT}")
    e(f"s_add_u32 s{G.sXB}, s{G.sXB}, {128*1152}")
    e(f"s_lshl_b32 s{G.cX}, s{sW}, 12")
    e(f"s_lshl_b32 s{G.sW0}, s{sJ}, 10")
    e(f"s_lshl_b32 s{G.sT}, s{sW}, 7")
    e(f"s_add_u32 s{G.sW0}, s{G.sW0}, s{G.sT}")
    e(f"s_and_b32 s{G.sR0}, s{sPAIR}, 3")
    e(f"s_lshl_b32 s{G.sR0}, s{G.sR0}, 1")
    e(f"s_add_u32 s{G.sR0}, s{G.sR0}, s{sJ}")
    if "norot" in EXP:
        e(f"s_mov_b32 s{G.sR0}, 0")
    e(f"s_and_b32 s{G.sT}, s{sW}, 1")
    e(f"s_cmp_eq_u32 s{G.sT}, 0")
    e(f"s_cselect_b32 s{G.sEX}, -1, 0")
    e(f"s_cselect_b32 s{G.sEX+1}, 0, -1")
    e(f"s_mov_b32 s{G.sTASK}, 0")
    e(f"s_mov_b32 s{G.sF}, 0")
    e.label("L_G_task")
    e(f"s_mov_b32 s{G.sXW}, {LDS_X}")
    e(f"s_mov_b32 s{G.sXR}, {LDS_X}")
    e(f"s_sub_u32 s{G.sT}, s{G.sR0}, 9")
    e(f"s_cselect_b32 s{G.sT}, s{G.sR0}, s{G.sT}")
    e(f"s_lshl_b32 s{G.sKX}, s{G.sT}, 7")
    e(f"s_lshl_b32 s{G.sWq}, s{G.sT}, 19")
    e(f"s_add_u32 s{G.sWq}, s{G.sWq}, s{G.sW0}")
    e(f"s_add_u32 s{G.sWE}, s{G.sW0}, {576*8192}")
    e(f"s_mov_b32 s{G.sNX}, 8")
    e(f"s_mov_b32 s{G.sNW}, 17")
    e(f"s_lshr_b32 s{G.sT2}, s{sW}, 1")
    e(f"s_lshl_b32 s{G.sT2}, s{G.sT2}, 10")
    e(f"s_add_u32 s{G.sT2}, s{G.sT2}, 16384")
    e.vm, e.lg = [], []
    run = lambda items: [it.emit(e) for it in items]
    run(g_dma_x_items(("x", 0)))
    run(g_dma_w_items(0, ("w", 0)))
    run(g_dma_x_items(("x", 1)))
    run(g_dma_w_items(1, ("w", 1)))
    e(f"v_and_b32 v{G.T0}, 15, v0")
    e(f"v_lshrrev_b32 v{G.T1}, 4, v0")
    e(f"v_lshlrev_b32 v{G.QST}, 4, v{G.T0}")
    e(f"v_lshrrev_b32 v{G.T2}, 1, v{G.T1}")
    e(f"v_lshl_add_u32 v{G.QST}, v{G.T2}, 8, v{G.QST}")
    e(f"v_and_b32 v{G.T2}, 1, v{G.T1}")
    e(f"v_lshl_add_u32 v{G.QST}, v{G.T2}, 3, v{G.QST}")
    e(f"v_and_b32 v{G.FL}, 6, v0")
    e(f"v_xor_b32 v{G.FL}, v{G.FL}, v{G.T1}")
    e(f"v_lshlrev_b32 v{G.XB0}, 7, v{G.T0}")
    e(f"v_lshl_add_u32 v{G.XB0}, v{G.FL}, 4, v{G.XB0}")
    e(f"v_lshlrev_b32 v{G.WB}, 10, v{G.T1}")
    e(f"v_bfe_u32 v{G.T0}, v0, 2, 2")
    e(f"v_lshl_add_u32 v{G.WB}, v{G.T0}, 7, v{G.WB}")
    e(f"v_bfe_u32 v{G.T0}, v0, 3, 2")
    e(f"v_lshl_add_u32 v{G.WB}, v{G.T0}, 5, v{G.WB}")
    e(f"v_and_b32 v{G.T0}, 3, v0")
    e(f"v_lshl_add_u32 v{G.WB}, v{G.T0}, 3, v{G.WB}")
    for k in range(1, 4):
        e(f"v_xor_b32 v{G.WB+k}, {32*k}, v{G.WB}")
    for k in range(4):
        e(f"v_add_u32 v{G.WB+k}, s{G.cW}, v{G.WB+k}")
    e(f"s_lshl_b32 s{G.sT}, s{sW}, 2")
    e(f"s_add_u32 s{G.sT}, s{G.sT}, {LDS_FL+16}")
    e(f"v_mov_b32 v{G.FLW}, s{G.sT}")
    e(f"v_lshlrev_b32 v{G.FLR}, 2, v{G.T0}")
    e(f"v_add_u32 v{G.FLR}, {LDS_FL+16}, v{G.FLR}")
    e(f"v_mov_b32 v{G.EP}, s{G.sF}")
    e(f"s_lshr_b32 s{G.sT}, s{sW}, 1")
    e(f"s_mul_i32 s{G.sQOFF}, s{G.sT}, 36864")
    e(f"s_add_u32 s{G.sQOFF}, s{G.sQOFF}, {LDS_R1}")
    e(f"s_and_b32 s{G.sT}, s{sW}, 1")
    e(f"s_lshl_b32 s{G.sT}, s{G.sT}, 11")
    e(f"v_add_u32 v{G.QST}, s{G.sT}, v{G.QST}")
    e(f"s_mov_b32 s{G.sSC}, {f32(math.log2(math.e) / math.sqrt(128.0))}")
    e(f"v_add_u32 v{G.XR0}, s{G.sXR}, v{G.XB0}")
    e(f"v_xor_b32 v{G.XR1}, 64, v{G.XR0}")
    for i in range(144):
        e(f"v_mov_b32 v{G.ACC+i}, 0")
    ts(e, G.T0, G.T1)
    e.wait_vm(lambda t: t in (("x", 0), ("w", 0)))
    ts(e, G.T0, G.T1)
    g_arrive(e)
    for x in g_reads_A(0):
        e(x, ("a", 0))
    flag_wait(e, G.FL, G.FLR, G.sF, 0, sleep=0)
    for i in range(9):
        e(g_read_B(i, 0), ("b", 0, i))
    run(g_dma_w_items(0, ("w", 2)))
    run(g_dma_x_items(("x", 2)))
    e("s_waitcnt lgkmcnt(0)")
    e.fence()
    e(f"s_mov_b32 s{G.sCNT}, 9")
    e.raw(".p2align 6")
    e.label("L_G_loop")
    vm0 = [("x", 1)] * 5 + [("w", 1)] * 4 + [("w", 2)] * 4 + [("x", 2)] * 5
    e.vm = list(vm0)
    e.lg = [("a", 0)] * 8 + [("b", 0, i) for i in range(9)]
    e.throttle = GTHQ
    g_step(e, 0, ool)
    g_step(e, 1, ool)
    e.throttle = 0
    assert e.vm == vm0[-len(e.vm):], e.vm
    e(f"s_sub_u32 s{G.sCNT}, s{G.sCNT}, 1")
    e(f"s_cmp_lg_u32 s{G.sCNT}, 0")
    e.branch("s_cbranch_scc1 L_G_loop")
    ts(e, G.T0, G.T1, True)
    e("s_waitcnt vmcnt(0) lgkmcnt(0)")
    e.vm, e.lg = [], []
    g_arrive(e)
    e(f"v_add_u32 v{G.T0}, s{G.sQOFF}, v{G.QST}")
    e(f"s_lshr_b32 s{G.sT2}, s{sW}, 1")
    e(f"s_add_u32 s{G.sT2}, s{G.sT2}, s{G.sTASK}")
    e(f"s_cmp_eq_u32 s{G.sT2}, 1")
    e(f"s_cselect_b32 s{G.sT}, {LDS_QT1}, s{G.sQOFF}")
    e(f"v_add_u32 v{G.T1}, s{G.sT}, v{G.QST}")
    e(f"s_cmp_eq_u32 s{G.sT2}, 2")
    e(f"s_cselect_b32 s{G.sT}, {LDS_QT2-8192}, s{G.sQOFF}")
    e(f"v_add_u32 v{G.T2}, s{G.sT}, v{G.QST}")

    def qpack(i, j):
        d = G.ACC + 16 * i + 4 * j
        for k in range(4):
            e(f"v_mul_f32 v{d+k}, s{G.sSC}, v{d+k}")
        e(f"v_cvt_pk_bf16_f32 v{d}, v{d}, v{d+1}")
        e(f"v_cvt_pk_bf16_f32 v{d+1}, v{d+2}, v{d+3}")

    def qwrite(i, j):
        d = G.ACC + 16 * i + 4 * j
        b = G.T1 if i < 2 else (G.T2 if i < 4 else G.T0)
        e(f"ds_write_b64 v{b}, {vr(d,2)} offset:{4096*i + 512*j}")
    tl = [(i, j) for i in range(9) for j in range(4)]
    for t in tl[:6]:
        qpack(*t)
    flag_wait(e, G.FL, G.FLR, G.sF, 0, sleep=0)
    for n, t in enumerate(tl):
        qwrite(*t)
        if n + 6 < len(tl):
            qpack(*tl[n + 6])
    e(f"s_add_u32 s{G.sTASK}, s{G.sTASK}, 2")
    e(f"v_mov_b32 v{G.T0}, s{G.sTASK}")
    e("s_waitcnt lgkmcnt(0)")
    e.lg = []
    e(f"ds_write_b32 v{G.FLW}, v{G.T0} offset:16")
    ts(e, G.T0, G.T1)
    e(f"s_lshr_b32 s{G.sT2}, s{G.sTASK}, 1")
    flag_wait(e, G.FL, G.FLR, G.sT2, 32, sleep=1)
    e(f"s_add_u32 s{G.sW0}, s{G.sW0}, 512")
    e(f"s_cmp_lt_u32 s{G.sTASK}, 4")
    e.branch("s_cbranch_scc1 L_G_task")

    tiles = o_tiles()
    acc = {t: G.OACC + 4 * k for k, t in enumerate(tiles)}
    e(f"s_lshr_b32 s{G.sP}, s{sJ}, 1")
    e(f"s_and_b32 s{G.sE}, s{sJ}, 1")
    e(f"v_lshlrev_b32 v{G.T0}, 4, v0")
    e(f"s_lshl_b32 s{G.sT}, s{G.sE}, 12")
    e(f"v_add_u32 v{G.LB1}, s{G.sT}, v{G.T0}")
    e(f"v_add_u32 v{G.LB1b}, 4096, v{G.LB1}")
    e(f"s_cmp_eq_u32 s{G.sE}, 0")
    e(f"s_cselect_b32 s{G.sT}, 5120, 0")
    e(f"v_add_u32 v{G.LB2}, s{G.sT}, v{G.T0}")
    e(f"v_lshrrev_b32 v{G.T1}, 4, v0")
    e(f"v_lshlrev_b32 v{G.T1}, 1, v{G.T1}")
    e(f"v_and_b32 v{G.T0}, 7, v0")
    e(f"v_xor_b32 v{G.T0}, v{G.T0}, v{G.T1}")
    e(f"v_lshrrev_b32 v{G.T2}, 3, v0")
    e(f"v_mul_u32_u24 v{G.ODMA}, 1152, v{G.T2}")
    e(f"v_lshl_add_u32 v{G.ODMA}, v{G.T0}, 4, v{G.ODMA}")
    e(f"s_lshl_b32 s{G.sT}, s{sJ}, 7")
    e(f"v_add_u32 v{G.ODMA}, s{G.sT}, v{G.ODMA}")
    e(f"v_lshrrev_b32 v{G.ODMA5}, 1, v0")
    e(f"v_mul_u32_u24 v{G.ODMA5}, 1152, v{G.ODMA5}")
    e(f"v_and_b32 v{G.T2}, 1, v0")
    e(f"v_lshl_add_u32 v{G.ODMA5}, v{G.T2}, 4, v{G.ODMA5}")
    e(f"s_lshl_b32 s{G.sT}, s{G.sP}, 5")
    e(f"s_add_u32 s{G.sT}, s{G.sT}, 1024")
    e(f"v_add_u32 v{G.ODMA5}, s{G.sT}, v{G.ODMA5}")
    e(f"s_mul_i32 s{G.sLB}, s{sW}, 11264")
    e(f"s_add_u32 s{G.sLB}, s{G.sLB}, {LDS_OST}")
    e(f"v_lshrrev_b32 v{G.T0}, 2, v0")
    e(f"v_lshlrev_b32 v{G.OB}, 7, v{G.T0}")
    e(f"v_bfe_u32 v{G.T2}, v0, 3, 2")
    e(f"v_lshl_add_u32 v{G.OB}, v{G.T2}, 5, v{G.OB}")
    e(f"v_and_b32 v{G.T2}, 3, v0")
    e(f"v_lshl_add_u32 v{G.OB}, v{G.T2}, 3, v{G.OB}")
    for k in range(1, 4):
        e(f"v_xor_b32 v{G.OB+k}, {32*k}, v{G.OB}")
    for k in range(4):
        e(f"v_add_u32 v{G.OB+k}, s{G.sLB}, v{G.OB+k}")
    e(f"v_lshlrev_b32 v{G.O5}, 3, v0")
    e(f"v_add_u32 v{G.O5}, s{G.sLB}, v{G.O5}")
    e(f"s_lshl_b32 s{G.sT}, s{sPAIR}, 2")
    e(f"s_add_u32 s{G.sT}, s{G.sT}, s{sW}")
    e(f"s_mul_i32 s{G.sO}, s{G.sT}, {8*36864}")
    e(f"s_mul_i32 s{G.sWo}, s{sW}, {8*147456}")
    e(f"s_and_b32 s{G.sSH}, s{sW}, 1")
    e(f"s_lshl_b32 s{G.sSH}, s{G.sSH}, 4")
    e(f"s_mov_b32 s{G.sTASK}, 0")
    for q in range(8):
        e(f"s_add_u32 s{G.sT}, s{G.sR0}, {q}")
        e(f"s_and_b32 s{G.sT2}, s{G.sT}, 3")
        e(f"s_mul_i32 s{G.sTB+q}, s{G.sT2}, 9216")
        e(f"s_bitcmp1_b32 s{G.sT}, 2")
        e(f"s_cselect_b32 s{G.sT}, 147456, 0")
        e(f"s_add_u32 s{G.sTB+q}, s{G.sTB+q}, s{G.sT}")

    def woff(q):
        g, q = divmod(q, 8)
        return g * 147456 + (q >> 2) * 4 * 147456 + (q & 3) * 36864

    def boff(q):
        return (q >> 2) * 4 * 36864 + (q & 3) * 9216

    def dmaW(q, tag, after=-1):
        b = (q & 1) * OSTB
        I = lambda t, k, tg=None: Item(t, k, after, tag=tg)
        out = [I(f"s_lshl2_add_u32 s{G.sT}, s{G.sTB+(q&7)}, s{G.sWo}", "s")]
        if q >= 8:
            out.append(I(f"s_add_u32 s{G.sT}, s{G.sT}, 147456", "s"))
            out.append(I(f"s_cmp_eq_u32 s{G.sTASK}, 3\ns_cselect_b32 s{G.sT}, {OOB}, s{G.sT}", "s"))
        out.append(I(f"s_add_u32 m0, s{G.sLB}, {b + 4096}", "s"))
        out.append(I(f"buffer_load_dwordx4 v{G.ODMA5}, {sr(S_WO)}, s{G.sT} offen lds", "d", tag))
        for rg in range(4):
            out.append(I(f"s_add_u32 m0, s{G.sLB}, {b + rg*1024}", "s"))
            out.append(I(f"buffer_load_dwordx4 v{G.ODMA}, {sr(S_WO)}, s{G.sT} offen lds", "d", tag))
            if rg < 3:
                out.append(I(f"s_add_u32 s{G.sT}, s{G.sT}, {8*1152}", "s"))
        return out

    def loadB(i):
        if i < 4:
            return f"buffer_load_dwordx4 {vr(G.OBF+4*i)}, v{G.LB1}, {sr(S_WS)}, s{G.sT2} offen offset:{1024*i} sc1"
        if i == 4:
            return f"buffer_load_dwordx4 {vr(G.OBF+4*i)}, v{G.LB1b}, {sr(S_WS)}, s{G.sT2} offen sc1"
        return f"buffer_load_dwordx4 {vr(G.OBF+4*i)}, v{G.LB2}, {sr(S_WS)}, s{G.sT2} offen offset:{1024*(i-5)} sc1"

    def readsA(q):
        par = q & 1
        b = par * OSTB
        out = [f"ds_read_b64_tr_b16 {vr(G.OAF+20*par+4*j+2*u,2)}, v{G.OB+j} offset:{b + u*2048}"
               for j in range(4) for u in range(2)]
        out += [f"ds_read_b64_tr_b16 {vr(G.OAF+20*par+16+2*u,2)}, v{G.O5} offset:{b + 4096 + u*512}" for u in range(2)]
        return out

    e.vm, e.lg = [], []
    run(dmaW(0, ("w", 0)))
    run(dmaW(1, ("w", 1)))
    for i in range(164):
        e(f"v_mov_b32 v{G.OACC+i}, 0")
    e.wait_vm(lambda t: t == ("w", 0))
    for x in readsA(0):
        e(x, ("a", 0))
    e("s_waitcnt lgkmcnt(0)")
    e.lg = []
    run(dmaW(2, ("w", 2)))
    e(f"s_lshl_b32 s{G.sT}, s{sPAIR}, 3")
    e(f"v_mov_b32 v{G.T1}, s{G.sT}")
    e.label("L_O_init")
    e(f"s_sub_u32 s{sBUD}, s{sBUD}, 1")
    e("s_cbranch_scc1 L_bail")
    e(f"buffer_load_dword v{G.T0}, v{G.T1}, {sr(S_DBG)}, 0 offen sc1")
    e("s_waitcnt vmcnt(0)")
    e(f"v_cmp_ne_u32 vcc, 8, v{G.T0}")
    e("s_cbranch_vccnz L_O_init")
    e(f"s_lshl_b32 s{G.sT2}, s{sW}, 1")
    e(f"s_add_u32 s{G.sT}, s{G.sT}, s{G.sT2}")
    e(f"s_lshl_b32 s{G.sT}, s{G.sT}, 8")
    e(f"s_add_u32 s{G.sT}, s{G.sT}, {FLG}")
    e(f"v_and_b32 v14, 1, v0")
    e(f"v_lshlrev_b32 v14, 8, v14")
    e(f"v_add_u32 v14, s{G.sT}, v14")
    e(f"v_mov_b32 v{G.T2}, {LDS_FL+64}")
    e.fence()
    e.raw(".p2align 6")
    e.label("L_O_task")
    if "serialO" in EXP:
        e(f"s_mov_b32 s{G.sT}, 4")
        flag_wait(e, G.T0, G.T2, G.sT, 0, sleep=4)
    e(f"s_add_u32 s{G.sT}, s{G.sTASK}, 1")
    flag_wait(e, G.T0, G.T2, G.sT, 0, sleep=4)
    if "avoid" in EXP:
        lab = e.newlabel("avoid")
        e.label(lab)
        e("s_sleep 4")
        e(f"ds_read_b32 v{G.T0}, v{G.T2}")
        e("s_waitcnt lgkmcnt(0)")
        e(f"v_cmp_eq_u32 vcc, s{sW}, v{G.T0}")
        e(f"s_cbranch_vccnz {lab}")
    e.label("L_O_poll")
    e(f"s_sub_u32 s{sBUD}, s{sBUD}, 1")
    e("s_cbranch_scc1 L_bail")
    e(f"buffer_load_dword v{G.T0}, v14, {sr(S_WS)}, 0 offen sc1")
    e("s_waitcnt vmcnt(0)")
    e.vm = []
    e(f"v_cmp_gt_u32 vcc, s{G.sT}, v{G.T0}")
    e("s_cbranch_vccz L_O_go")
    e("s_sleep 8")
    e("s_branch L_O_poll")
    e.label("L_O_go")
    ts(e, G.T0, G.T1, True)
    e(f"s_add_u32 s{G.sT2}, s{G.sO}, s{G.sTB}")
    e.throttle = GTHO
    for i in range(9):
        Item(loadB(i), "d", tag=("b", 0, i)).emit(e)
    e.lg = [("a", 0)] * 10
    for q in range(8):
        par = q & 1
        M = []
        lastuse = {}
        for i in range(9):
            for n, j in enumerate([j for j in range(5) if (i, j) in acc]):
                pre = None
                if n == 0:
                    def pre(e, i=i, q=q):
                        if i == 0:
                            e.wait_lg(lambda t: t == ("a", q))
                        e.wait_vm(lambda t: t == ("b", q, i))
                M.append((f"v_mfma_f32_16x16x32_bf16 {vr(acc[(i,j)])}, {vr(G.OAF+20*par+4*j)}, {vr(G.OBF+4*i)}, {vr(acc[(i,j)])}", pre))
                lastuse[i] = len(M) - 1
        QB = []
        if q < 7:
            QB.append(Item(f"s_add_u32 s{G.sT2}, s{G.sO}, s{G.sTB+q+1}", "s", -1, 3))
            QB += [Item(loadB(i), "d", lastuse[i], tag=("b", q + 1, i)) for i in range(9)]
        QA = [Item(lambda e, q=q: e.wait_vm(lambda t: t == ("w", q + 1)), "s", 0)]
        QA += [Item(x, "l", 0, tag=("a", q + 1)) for x in readsA(q + 1)]
        QA += [Item(lambda e, q=q: e.wait_lg(lambda t: t == ("a", q + 1)), "s", 18)]
        QA += dmaW(q + 3, ("w", q + 3), 18)
        schedule(e, M, [QB, QA])
    e.throttle = 0
    e(f"s_add_u32 s{G.sO}, s{G.sO}, 36864")
    e(f"s_add_u32 s{G.sWo}, s{G.sWo}, 147456")
    e(f"s_add_u32 s{G.sTASK}, s{G.sTASK}, 1")
    ts(e, G.T0, G.T1)
    e(f"s_cmp_lt_u32 s{G.sTASK}, 4")
    e.branch("s_cbranch_scc1 L_O_task")
    e("s_waitcnt vmcnt(0) lgkmcnt(0)")
    e.vm, e.lg = [], []
    e(f"s_lshl_b32 s{G.sT}, s{sW}, 2")
    e(f"s_add_u32 s{G.sT}, s{G.sT}, {LDS_FL+16}")
    e(f"v_mov_b32 v{G.FLW}, s{G.sT}")
    e(f"v_and_b32 v{G.T0}, 3, v0")
    e(f"v_lshlrev_b32 v{G.FLR}, 2, v{G.T0}")
    e(f"v_add_u32 v{G.FLR}, {LDS_FL+16}, v{G.FLR}")
    e(f"v_mov_b32 v{G.EP}, s{G.sF}")
    g_arrive(e)
    RED, OST, R2_ = 8, 9, 10
    e(f"v_lshlrev_b32 v{RED}, 4, v0")
    e(f"v_and_b32 v{G.T0}, 15, v0")
    e(f"v_lshrrev_b32 v{G.T1}, 4, v0")
    e(f"v_mul_u32_u24 v{OST}, 2304, v{G.T0}")
    e(f"v_lshl_add_u32 v{OST}, v{G.T1}, 3, v{OST}")
    e(f"s_mul_i32 s{G.sT}, s{sB}, {144*2304}")
    e(f"s_mul_i32 s{G.sT2}, s{sBLK}, 1152")
    e(f"s_add_u32 s{G.sT}, s{G.sT}, s{G.sT2}")
    e(f"v_add_u32 v{OST}, s{G.sT}, v{OST}")
    e(f"s_mul_i32 s{G.sO}, s{G.sE}, {4*16*2304}")
    e(f"s_cmp_eq_u32 s{G.sE}, 0")
    e(f"s_cselect_b32 s{G.sWo}, {5*16*2304}, 0")
    e(f"s_lshl_b32 s{G.sCNT}, s{sJ}, 7")
    e(f"s_lshl_b32 s{G.sT3}, s{G.sP}, 5")
    e(f"v_add_u32 v{R2_}, 63488, v{RED}")
    flag_wait(e, G.FL, G.FLR, G.sF, 0, sleep=0)
    for w in range(1, 4):
        e(f"s_cmp_eq_u32 s{sW}, {w}")
        e.branch(f"s_cbranch_scc1 L_red{w}")
    NTL = len(tiles)

    def slot(src, k):
        return (src * 31 + len([x for x in range(k) if x % 4 != src])) * 1024

    for w in range(4):
        e.label(f"L_red{w}")
        e.hist = []
        e.lg = []
        e(f"v_add_u32 v{G.T0}, {w*31*1024}, v{RED}")
        for k, t in enumerate(tiles):
            if k % 4 != w:
                e(f"ds_write_b128 v{G.T0}, {vr(acc[t])} offset:{slot(w,k) - w*31*1024}")
        e("s_waitcnt lgkmcnt(0)")
        e.lg = []
        g_arrive(e)
        flag_wait(e, G.FL, G.FLR, G.sF, 0, sleep=0)
        own = [k for k in range(NTL) if k % 4 == w]
        free = [acc[tiles[k]] for k in range(NTL) if k % 4 != w]
        tmp = {}
        n = 0
        for k in own:
            for src in range(4):
                if src == w:
                    continue
                a = slot(src, k)
                r_ = free[n] if n < len(free) else G.OBF + 4 * (n - len(free))
                tmp[(k, src)] = r_
                n += 1
                if a < 63488:
                    e(f"ds_read_b128 {vr(r_)}, v{RED} offset:{a}", (k, src))
                else:
                    e(f"ds_read_b128 {vr(r_)}, v{R2_} offset:{a-63488}", (k, src))
        for k in own:
            t = tiles[k]
            for src in range(4):
                if src == w:
                    continue
                e.wait_lg(lambda x: x == (k, src))
                for q in range(4):
                    e(f"v_add_f32 v{acc[t]+q}, v{acc[t]+q}, v{tmp[(k,src)]+q}")
            e(f"v_cvt_pk_bf16_f32 v{acc[t]}, v{acc[t]}, v{acc[t]+1}")
            e(f"v_cvt_pk_bf16_f32 v{acc[t]+1}, v{acc[t]+2}, v{acc[t]+3}")
            i, j = t
            if i < 5:
                e(f"s_add_u32 s{G.sT}, s{G.sO}, {i*16*2304}")
            else:
                e(f"s_add_u32 s{G.sT}, s{G.sWo}, {(i-5)*16*2304}")
            if j < 4:
                e(f"s_add_u32 s{G.sT}, s{G.sT}, s{G.sCNT}")
                off = 32 * j
            else:
                e(f"s_add_u32 s{G.sT}, s{G.sT}, s{G.sT3}")
                off = 1024
            e(f"buffer_store_dwordx2 {vr(acc[t],2)}, v{OST}, {sr(S_OUT)}, s{G.sT} offen offset:{off}")
        ts(e, G.T0, G.T1)
        e.branch("s_branch L_bail")
    for f in ool:
        f(e)


def main():
    e = E()
    e.throttle = 0
    e.raw(f"; @launch grid=(256,1,1) block=(512,1,1) lds={LDS_TOTAL}")
    e.raw('.amdgcn_target "amdgcn-amd-amdhsa--gfx950"\n.text')
    e.raw(f".globl {NAME}_kernel\n.p2align 8\n.type {NAME}_kernel,@function\n{NAME}_kernel:")
    prologue(e, "L_end")
    e("s_barrier")
    ts_init(e)
    ts(e, 1, 2)
    e(f"s_cmp_lt_u32 s{sWAVE}, 4")
    e.branch("s_cbranch_scc1 L_A")
    gen_G(e)
    e.label("L_A")
    e.hist = []
    gen_A(e)
    e.label("L_bail")
    e("s_waitcnt vmcnt(0) lgkmcnt(0)")
    e.label("L_end")
    e("s_endpgm")
    e.raw('.section .rodata,"a"')
    e.raw(f""".p2align 6
.amdhsa_kernel {NAME}_kernel
  .amdhsa_next_free_vgpr 256
  .amdhsa_next_free_sgpr 102
  .amdhsa_accum_offset 256
  .amdhsa_group_segment_fixed_size 0
  .amdhsa_kernarg_size 104
  .amdhsa_user_sgpr_count 2
  .amdhsa_user_sgpr_kernarg_segment_ptr 1
  .amdhsa_system_sgpr_workgroup_id_x 1
.end_amdhsa_kernel""")
    sys.stdout.write(e.text())
    print(f"instructions: {e.n_ins}, max vgpr {e.maxv}", file=sys.stderr)


if __name__ == "__main__":
    main()
```

```python
import sys, math, struct, os
from emit import E, vr, sr

NAME = "concat_heads__mha_block_cached__gqa_block_cached__near_ridge"
WS_BYTES = 292618240
OWS = 0
NI = 8
NT = NI // 2
NX = 3
XST = 18432
LDS_QT1 = NI * 8192
LDS_ST = LDS_QT1 + 8192
LDS_X = LDS_ST
LDS_W = LDS_ST + NX * XST
LDS_R1 = LDS_ST
LDS_R2 = LDS_R1 + 36864
LDS_QT2 = LDS_R2 + 36864
LDS_FL = LDS_W + 32768
assert LDS_QT2 + 8192 <= LDS_FL
LDS_OST = LDS_QT1
LDS_TOTAL = LDS_FL + 1280
CA, CG, CQ, CP, CL = 0, 256, 512, 768, 1024
assert LDS_TOTAL <= 163840, LDS_TOTAL
THR = 16.0
TS = int(os.environ.get("TS", "0"))
TSOFF = 80000000
EXP = os.environ.get("EXP", "")
KVF = os.environ.get("KVF", "nt")
OOB = 0x40000000
KVW = int(os.environ.get("KVW", "2"))
TRIALS = int(os.environ.get("TRIALS", "400"))
KEARLY = int(os.environ.get("KEARLY", "2"))
KDPOS = int(os.environ.get("KDPOS", "3"))
KVAT = int(os.environ.get("KVAT", "16"))
GTHQ = int(os.environ.get("GTHQ", "0"))
GTHO = int(os.environ.get("GTHO", "4"))
FLG = 40000000 // 256 * 256
POLL = os.environ.get("POLL", "sload")
QSTEP = int(os.environ.get("QSTEP", "4"))


def f32(x):
    return "0x%08x" % struct.unpack("<I", struct.pack("<f", x))[0]


S_X, S_K, S_V, S_WQ, S_WO, S_OUT, S_DBG, S_WS = 32, 36, 40, 44, 48, 52, 56, 60
sWAVE, sW, sPAIR, sB, sJ, sBLK = 64, 65, 66, 67, 68, 69
sRET = 88
sBUD = 90
sTS = 91


def prologue(e, endlabel):
    e("s_cmp_ge_u32 s2, 256")
    e(f"s_cbranch_scc1 {endlabel}")
    e("s_load_dwordx16 s[4:19], s[0:1], 0")
    e("s_load_dwordx8 s[20:27], s[0:1], 64")
    e("s_load_dwordx2 s[28:29], s[0:1], 96")
    e("v_lshrrev_b32 v1, 6, v0")
    e(f"v_readfirstlane_b32 s{sWAVE}, v1")
    e("v_and_b32 v0, 63, v0")
    e(f"v_lshlrev_b32 v1, 2, v0")
    e(f"v_add_u32 v1, {LDS_FL}, v1")
    e("v_mov_b32 v2, 0")
    for k in range(5):
        e(f"ds_write_b32 v1, v2 offset:{256*k}")
    e(f"s_and_b32 s{sW}, s{sWAVE}, 3")
    e("s_and_b32 s3, s2, 7")
    e("s_lshl_b32 s3, s3, 2")
    e(f"s_lshr_b32 s{sPAIR}, s2, 6")
    e(f"s_add_u32 s{sPAIR}, s{sPAIR}, s3")
    e(f"s_lshr_b32 s{sJ}, s2, 3")
    e(f"s_and_b32 s{sJ}, s{sJ}, 7")
    e(f"s_and_b32 s{sB}, s{sPAIR}, 15")
    e(f"s_lshr_b32 s{sBLK}, s{sPAIR}, 4")
    e(f"s_mov_b32 s{sBUD}, 0x40000")
    for dst, nbytes in ((S_X, 16 * 144 * 576 * 2), (S_K, 1 << 26), (S_V, 1 << 26), (S_WQ, 576 * 4096 * 2),
                        (S_WO, 576 * 4096 * 2), (S_OUT, 16 * 144 * 1152 * 2), (S_DBG, 256), (S_WS, WS_BYTES)):
        e(f"s_mov_b32 s{dst+2}, {nbytes}")
        e(f"s_mov_b32 s{dst+3}, 0x20000")
    e("s_waitcnt lgkmcnt(0)")
    e.lg = []
    e(f"s_cmp_eq_u32 s{sBLK}, 0")
    for dst, a, b in ((S_X, 4, 14), (S_K, 6, 16), (S_V, 8, 18), (S_WQ, 10, 20), (S_WO, 12, 22)):
        e(f"s_cselect_b32 s{dst}, s{a}, s{b}")
        e(f"s_cselect_b32 s{dst+1}, s{a+1}, s{b+1}")
    for dst, src in ((S_OUT, 24), (S_DBG, 26), (S_WS, 28)):
        e(f"s_mov_b32 s{dst}, s{src}")
        e(f"s_and_b32 s{dst+1}, s{src+1}, 0xffff")
    for dst in (S_X, S_K, S_V, S_WQ, S_WO):
        e(f"s_and_b32 s{dst+1}, s{dst+1}, 0xffff")


def ts_init(e):
    if not TS:
        return
    e(f"s_lshl_b32 s{sTS}, s2, 3")
    e(f"s_add_u32 s{sTS}, s{sTS}, s{sWAVE}")
    e(f"s_lshl_b32 s{sTS}, s{sTS}, 11")
    e(f"s_add_u32 s{sTS}, s{sTS}, {TSOFF}")
    e("s_mov_b32 s18, 0")


def ts(e, va, vd, budget=False):
    if TS not in (1, 3):
        return
    e("s_memtime s[4:5]")
    e("s_waitcnt lgkmcnt(0)")
    e(f"v_mov_b32 v{va}, 0")
    e(f"v_mov_b32 v{vd}, s4")
    e(f"buffer_store_dword v{vd}, v{va}, {sr(S_WS)}, s{sTS} offen")
    e.vm.pop()
    e(f"s_add_u32 s{sTS}, s{sTS}, 4")
    if budget:
        e(f"v_mov_b32 v{vd}, s{sBUD if TS == 1 else 18}")
        e(f"buffer_store_dword v{vd}, v{va}, {sr(S_WS)}, s{sTS} offen")
        e.vm.pop()
        e(f"s_add_u32 s{sTS}, s{sTS}, 4")


def flag_check(e, ool, vfl, vaddr, sF, off, tag="fl"):
    e.wait_lg(lambda t: t == tag)
    e(f"v_cmp_gt_u32 vcc, s{sF}, v{vfl}")
    lab = e.newlabel("spin")
    back = e.newlabel("spinb")
    e.branch(f"s_cbranch_vccnz {lab}", fence=False)
    e.label(back)

    def f(e):
        e.label(lab)
        e.hist = []
        e(f"ds_read_b32 v{vfl}, v{vaddr} offset:{off}")
        e(f"s_sub_u32 s{sBUD}, s{sBUD}, 1")
        e("s_cbranch_scc1 L_bail")
        e("s_waitcnt lgkmcnt(0)")
        e(f"v_cmp_gt_u32 vcc, s{sF}, v{vfl}")
        e.branch(f"s_cbranch_vccz {back}", fence=False)
        e.branch(f"s_branch {lab}", fence=False)
    ool.append(f)


def flag_wait(e, vfl, vaddr, sF, off, sleep=2):
    lab = e.newlabel("fw")
    e.label(lab)
    if sleep:
        e(f"s_sleep {sleep}")
    e(f"s_sub_u32 s{sBUD}, s{sBUD}, 1")
    e("s_cbranch_scc1 L_bail")
    e(f"ds_read_b32 v{vfl}, v{vaddr} offset:{off}")
    e("s_waitcnt lgkmcnt(0)")
    e.lg = []
    e(f"v_cmp_gt_u32 vcc, s{sF}, v{vfl}")
    e.branch(f"s_cbranch_vccnz {lab}", fence=False)


COST = dict(s=1, v=1, t=2, l=2, d=3, w=3, b=3)


class Item:
    def __init__(self, do, kind, after=-1, before=10**9, tag=None, cost=None, needs=None, delay=0):
        self.do, self.kind, self.after, self.before, self.tag = do, kind, after, before, tag
        self.cost = cost if cost is not None else COST[kind]
        self.needs, self.delay = needs, delay
        self.at = None

    def ready(self, k):
        if self.after > k:
            return False
        if self.needs is not None:
            return self.needs.at is not None and self.needs.at + self.delay <= k
        return True

    def emit(self, e, k=10**6):
        assert self.needs is None or self.needs.at is not None, ("unmet dependency", self.do)
        self.at = k
        if self.kind == "d" and e.throttle and len(e.vm) >= e.throttle:
            n = e.throttle - 1
            e(f"s_waitcnt vmcnt({n})")
            e.vm = e.vm[len(e.vm) - n:] if n else []
        if callable(self.do):
            self.do(e)
        elif self.kind == "d" and getattr(e, "nodma", "") and e.nodma in self.do:
            e("s_nop 0")
            e.vm.append(self.tag)
        else:
            e(self.do, self.tag)


ASLOTS = int(os.environ.get('ASLOTS', '4'))
import random


def estimate(lines):
    gaps = []
    cur = 0
    prev = None
    for l in lines:
        l = l.strip()
        if not l or l.endswith(":") or l.startswith("."):
            continue
        mn = l.split()[0]
        if "mfma" in mn:
            gaps.append(cur); cur = 1; prev = "m"
            continue
        if mn.startswith("v_"):
            c = 2 if mn in ("v_exp_f32", "v_rcp_f32") else 1
            if prev == "m":
                c += 1
            prev = "v"
        elif mn.startswith("ds_read"):
            c = 2 + (1 if prev == "v" else 0); prev = "l"
        elif mn.startswith("ds_"):
            c = 3 + (2 if prev == "v" else 0); prev = "l"
        elif mn.startswith("buffer"):
            c = 3 + (1 if prev == "v" else 0); prev = "l"
        elif mn.startswith("s_cbranch") or mn == "s_branch":
            c = 3; prev = "s"
        elif mn == "s_nop":
            c = int(l.split()[1]) + 1; prev = "s"
        else:
            c = 1; prev = "s"
        cur += c
    gaps.append(cur)
    return 4 * (gaps[0] + sum(max(4, g) for g in gaps[1:]))


def best_seed(fn, lg0, trials):
    best = (10**9, None)
    for seed in range(trials):
        t = E()
        t.throttle = 0
        t.lg = list(lg0)
        fn(t, seed)
        c = estimate(t.lines)
        if c < best[0]:
            best = (c, seed)
    return best


def schedule(e, mfmas, queues, NSL0=3, spread=False, seed=None):
    rng = random.Random(seed) if seed is not None else None
    allq = queues
    if rng:
        pw = rng.choice([0.0, 0.1, 0.2, 0.35])
        nsl_choices = rng.choice([[3, 4], [3, 4, 5], [4], [3, 3, 4], [4, 5], [3, 4, 4, 5, 6]])

    def force(it, k):
        if it.at is not None:
            return
        for q in queues:
            if it in q:
                while True:
                    x = q[0]
                    if x.needs is not None:
                        force(x.needs, k)
                    q.pop(0)
                    x.emit(e, k)
                    if x is it:
                        return

    for k, (txt, pre) in enumerate(mfmas):
        for q in queues:
            for it in [x for x in q if x.before <= k]:
                force(it, k - 1)
        if pre:
            pre(e)
        e(txt)
        slot = 0
        NSL = NSL0
        queues = allq
        if rng:
            NSL = rng.choice(nsl_choices)
            if rng.random() < pw:
                queues = list(allq)
                rng.shuffle(queues)
            spread = rng.random() < 0.7
        valu_seen = False
        progress = True
        while slot < NSL and progress:
            progress = False
            cand = None
            anyv = any(q and q[0].ready(k) and q[0].kind in "vt" for q in queues)
            for q in queues:
                if q and q[0].ready(k) and q[0].kind in "ldwb" and not valu_seen and (slot == 0 or (slot + q[0].cost <= NSL and not (spread and anyv))):
                    cand = q
                    break
            if cand is None and slot == 0:
                for q in queues:
                    if q and q[0].ready(k) and q[0].kind == "s":
                        cand = q
                        break
                if cand is None:
                    slot = 1
            if cand is None:
                for q in queues:
                    if q and q[0].ready(k) and q[0].kind in "vt" and (slot + q[0].cost <= NSL or slot <= 1):
                        cand = q
                        break
            if cand is None:
                for q in queues:
                    if q and q[0].ready(k) and q[0].kind == "s":
                        cand = q
                        break
            if cand is not None:
                it = cand.pop(0)
                it.emit(e, k)
                slot += it.cost
                if it.kind in "vt":
                    valu_seen = True
                progress = True
    for q in queues:
        while q:
            force(q[0], len(mfmas))


class A:
    DMA, KR0, KR1, VR0, VR1, VR2, VR3, FLA, FL, MX, T2 = range(1, 12)
    T0, T1 = MX, FL
    ONE = 12
    L = 16
    C = 28
    S = 40
    FP = 64
    Q = 112
    O = 160
    sF, sMK, sWR, sG, sTHR, sFLOOR, cK1, cK2, cV1, cV2, sSP, sGEN, sT2, sOOFF, sLEFT, sT, sDL, sPH = range(70, 88)


NSTEADY = 2 * (NI - 3)
NOST = 8


def a_dma_items(kind, after):
    it = []
    if kind == "k":
        it.append(Item(f"s_add_u32 m0, s{A.sWR}, s{A.cK1}", "s", after))
        it.append(Item(f"buffer_load_dwordx4 v{A.DMA}, {sr(S_K)}, s{A.sG} offen {KVF} lds", "d", after))
        it.append(Item(f"s_add_u32 m0, s{A.sWR}, s{A.cK2}", "s", after))
        it.append(Item(f"buffer_load_dwordx4 v{A.DMA}, {sr(S_K)}, s{A.sG} offen offset:128 {KVF} lds", "d", after))
    else:
        it.append(Item(f"s_add_u32 m0, s{A.sWR}, s{A.cV1}", "s", after))
        it.append(Item(f"buffer_load_dwordx4 v{A.DMA}, {sr(S_V)}, s{A.sG} offen {KVF} lds", "d", after))
        it.append(Item(f"s_add_u32 m0, s{A.sWR}, s{A.cV2}", "s", after))
        it.append(Item(f"buffer_load_dwordx4 v{A.DMA}, {sr(S_V)}, s{A.sG} offen offset:128 {KVF} lds", "d", after))
        it.append(Item(f"s_add_u32 s{A.sG}, s{A.sG}, 8192", "s", after))
        it.append(Item(f"s_sub_u32 s{A.sLEFT}, s{A.sLEFT}, 1\ns_cselect_b32 s{A.sG}, {OOB}, s{A.sG}", "s", after))
        it.append(Item(f"s_add_u32 s{A.sWR}, s{A.sWR}, 16384", "s", after))
        it.append(Item(f"s_and_b32 s{A.sWR}, s{A.sWR}, {NT*16384-1}", "s", after))
        it.append(Item(f"s_cmp_eq_u32 s{A.sWR}, {(NT-1)*16384}\ns_cselect_b32 s{A.sDL}, s{A.sPH}, 16384", "s", after, cost=2))
    return it


def a_kread(dst, i):
    u, s_ = i >> 2, i & 3
    return f"ds_read_b128 {vr(dst)}, v{A.KR1 if s_&1 else A.KR0} offset:{(s_>>1)*4096 + u*2048}"


def a_qread(e, sbase, d01, d8):
    e(f"v_lshlrev_b32 v{A.T2}, 4, v0")
    e(f"v_add_u32 v{A.T2}, s{sbase}, v{A.T2}")
    for s_ in range(4):
        e(f"ds_read_b128 {vr(d8+4*s_)}, v{A.T2} offset:{32768+1024*s_}")
    e(f"s_lshl_b32 s{A.sT2}, s{sW}, 13")
    e(f"v_add_u32 v{A.T2}, s{A.sT2}, v{A.T2}")
    for i in range(8):
        e(f"ds_read_b128 {vr(d01+4*i)}, v{A.T2} offset:{1024*i}")


def a_flagstore(e, val):
    e(f"s_lshl_b32 s{A.sT}, s{sPAIR}, 3")
    e(f"s_add_u32 s{A.sT}, s{A.sT}, s{sJ}")
    e(f"s_lshl_b32 s{A.sT}, s{A.sT}, 8")
    e(f"s_add_u32 s{A.sT}, s{A.sT}, {FLG}")
    e(f"v_mov_b32 v{A.T0}, s{A.sT}")
    e(f"v_mov_b32 v{A.T1}, {val}")
    e("s_mov_b64 exec, 1")
    e(f"buffer_store_dword v{A.T1}, v{A.T0}, {sr(S_WS)}, 0 offen sc1")
    e.vm.pop()
    e("s_mov_b64 exec, -1")


def a_signal(e):
    a_flagstore(e, f"s{A.sGEN}")
    e(f"ds_inc_u32 v{A.FLA}, v{A.ONE} offset:{CL}")


def a_flaginit(e):
    a_flagstore(e, "0")
    e("s_waitcnt vmcnt(0)")
    e(f"s_lshl_b32 s{A.sT}, s{sPAIR}, 3")
    e(f"v_mov_b32 v{A.T0}, s{A.sT}")
    e(f"v_mov_b32 v{A.T1}, 1")
    e("s_mov_b64 exec, 1")
    e(f"buffer_atomic_add v{A.T1}, v{A.T0}, {sr(S_DBG)}, 0 offen sc1")
    e.vm.pop()
    e("s_mov_b64 exec, -1")


def a_qstep_work(e, R, ool):
    skip = e.newlabel("qskip")
    nosig = e.newlabel("nosig")
    e(f"s_cmp_eq_u32 s{A.sGEN}, 0")
    e(f"s_cbranch_scc1 {skip}")
    e(f"s_cmp_lg_u32 s{sW}, 0")
    e(f"s_cbranch_scc1 {nosig}")
    a_signal(e)
    e.label(nosig)
    e(f"s_cmp_eq_u32 s{A.sGEN}, 3")
    e(f"s_cbranch_scc1 {skip}")
    e(f"s_mov_b32 s{A.sT}, 8")
    flag_wait(e, A.FL, A.FLA, A.sT, CQ, sleep=0)
    if R == 2:
        e(f"s_cmp_eq_u32 s{A.sGEN}, 1")
        e(f"s_mov_b32 s{A.sT}, {LDS_R2}")
        e(f"s_cselect_b32 s{A.sT}, {LDS_R1}, s{A.sT}")
        a_qread(e, A.sT, A.O + 64, A.Q + 32)
        e("s_waitcnt lgkmcnt(0)")
    e(f"ds_inc_u32 v{A.FLA}, v{A.ONE} offset:{CP}")
    e.label(skip)


sCR, sCF, sCS = 92, 98, 100


def a_spin(e):
    flag_wait(e, A.FL, A.FLA, A.sF, CA, sleep=0)


def a_step(e, R, p, ool, seed=None):
    nextp = (p + 1) % 3
    Gr = lambda k: A.FP + 16 * (k % 3)
    K = [Gr(p) + 4 * i for i in range(4)] + [Gr(p + 1) + 4 * i for i in range(4)]
    V = [Gr(p + 2) + 4 * i for i in range(4)] + [Gr(p) + 4 * i for i in range(4)]
    Kn = [Gr(nextp) + 4 * i for i in range(4)] + [Gr(nextp + 1) + 4 * i for i in range(4)]
    base = 8 * R
    lastqk = 8 * (R - 1)
    lastpv = base + 9 * (R - 1)
    end = base + 9 * R
    wl = lambda tag: (lambda e: e.wait_lg(lambda t: t == tag))
    M = []
    for r in range(R):
        for idx in range(8):
            u, s = idx >> 2, idx & 3
            d = A.S + 8 * r + 4 * u
            c = vr(A.C + 4 * r) if s == 0 else vr(d)
            pre = None
            if r == 0:
                pre = wl(("k", 3)) if idx == 0 else (wl(("k", idx + 1)) if idx in (4, 6) else None)
            M.append((f"v_mfma_f32_16x16x32_bf16 {vr(d)}, {vr(K[idx])}, {vr(A.Q+16*r+4*s)}, {c}", pre))
    for r in range(R):
        for T in range(8):
            o = A.O + 32 * r + 4 * T
            pre = None
            if r == 0:
                pre = wl(("v", 3)) if T == 0 else (wl(("v", T + 1)) if T in (4, 6) else None)
            M.append((f"v_mfma_f32_16x16x32_bf16 {vr(o)}, {vr(V[T])}, {vr(A.S+8*r)}, {vr(o)}", pre))
        M.append((f"v_mfma_f32_16x16x32_bf16 {vr(A.L+4*r)}, {vr(A.ONE)}, {vr(A.S+8*r)}, {vr(A.L+4*r)}", None))

    def flagcmp(e):
        e.wait_lg(lambda t: t == "fl")
        e(f"v_cmp_gt_u32 s[{sCF}:{sCF+1}], s{A.sF}, v{A.FL}")

    QV = []
    QC = []
    QZ = []
    fc0 = Item(flagcmp, "v", base - 1)
    cpc = None
    for r in range(R):
        b = A.S + 8 * r
        e1 = 8 * r + 7 + 2
        need = base + 9 * r
        q = []
        mx = Item(f"v_max3_f32 v{A.MX}, v{b}, v{b+1}, v{b+2}\nv_max3_f32 v{A.MX}, v{A.MX}, v{b+3}, v{b+4}\n"
                  f"v_max3_f32 v{A.MX}, v{A.MX}, v{b+5}, v{b+6}\nv_max_f32 v{A.MX}, v{A.MX}, v{b+7}\n"
                  f"v_cmp_lt_f32 s[{sCR+2*r}:{sCR+2*r+1}], s{A.sTHR}, v{A.MX}", "v", e1, cost=5)
        if r == R - 1:
            QC.append(fc0)
        QC.append(mx)

        def chk(e, r=r):
            lab = e.newlabel("rare")
            back = e.newlabel("rareb")
            if r == R - 1:
                e(f"s_or_b64 s[{sCF}:{sCF+1}], s[{sCF}:{sCF+1}], s[{sCR+2*r}:{sCR+2*r+1}]")
            else:
                e(f"s_cmp_lg_u64 s[{sCR+2*r}:{sCR+2*r+1}], 0")
            e.branch(f"s_cbranch_scc1 {lab}", fence=False)
            e.label(back)

            def f(e):
                e.label(lab)
                e.hist = []
                if r == R - 1:
                    a_spin(e)
                    e(f"s_cmp_eq_u64 s[{sCR+2*r}:{sCR+2*r+1}], 0")
                    e(f"s_cbranch_scc1 {back}")
                e(f"s_call_b64 s[{sRET}:{sRET+1}], L_rare{r}")
                e(f"s_branch {back}")
            ool.append(f)
        ck = Item(chk, "b", e1, needs=mx, delay=2, cost=4)
        QC.append(ck)
        if r == R - 1:
            cpc = ck
        for i in range(8):
            q.append(Item(f"v_exp_f32 v{b+i}, v{b+i}", "t", e1, needs=ck if i == 0 else None))
            if i in (2, 4, 6):
                k = i // 2 - 1
                q.append(Item(f"v_cvt_pk_bf16_f32 v{b+k}, v{b+2*k}, v{b+2*k+1}", "v", e1))
        q.append(Item(f"v_cvt_pk_bf16_f32 v{b+3}, v{b+6}, v{b+7}", "v", e1, need - 1))
        QV.append(q)
    QL = []

    def vread(T, u, after):
        QL.append(Item(f"ds_read_b64_tr_b16 {vr(V[T]+2*u,2)}, v{A.VR0+(T&3)} offset:{8192+(T>>2)*4096+u*2048}", "l", after, base, ("v", T)))

    for T in range(4):
        vread(T, 0, T)
        vread(T, 1, T)
    for T in range(4, 8):
        vread(T, 0, lastqk + T - 4)
        vread(T, 1, lastqk + T - 4)
    fl0 = Item(f"ds_read_b32 v{A.FL}, v{A.FLA} offset:{CA}", "l", base - 4, base - 1, tag="fl")
    QL.append(fl0)
    fc0.needs, fc0.delay = fl0, 2
    rr = random.Random(seed)
    KEARLY = rr.choice([0, 1, 2, 3, 4, 6, 8])
    KDPOS = rr.choice([-6, -3, 0, 2, 4])
    KA = lastpv - KEARLY
    for i in range(4):
        QL.append(Item(a_kread(Kn[i], i), "l", KA + i, tag=("kn", i), needs=cpc, delay=1))
    for i in range(4, 8):
        QL.append(Item(a_kread(Kn[i], i), "l", lastpv + V.index(Kn[i]), tag=("kn", i)))
    fl1 = Item(f"ds_read_b32 v{A.FL}, v{A.FLA} offset:{CA}", "l", end - 6, end - 3, tag="fl")
    QL.append(fl1)
    QS = a_dma_items("v", 0)
    QS.append(Item(f"s_waitcnt vmcnt({NSTEADY})", "s", 7))
    QS.append(Item(f"ds_inc_u32 v{A.FLA}, v{A.ONE} offset:{CA}", "w", 7, base - 5, tag="flw"))
    QS.append(Item(f"s_add_u32 s{A.sF}, s{A.sF}, 4", "s", 7))
    QS.append(Item(f"v_add_u32 v{A.KR0}, s{A.sDL}, v{A.KR0}", "v", 3))
    QS.append(Item(f"v_add_u32 v{A.KR1}, s{A.sDL}, v{A.KR1}", "v", 3, base - 1))
    QS.append(Item(f"s_waitcnt vmcnt({NSTEADY-2})", "s", base + 7, needs=cpc))
    QS.append(Item(f"ds_inc_u32 v{A.FLA}, v{A.ONE} offset:{CA}", "w", base + 7, end - 7, tag="flw"))
    QS.append(Item(f"s_add_u32 s{A.sF}, s{A.sF}, 4", "s", base + 7))
    QS += a_dma_items("k", lastpv + KDPOS)
    for k in range(4):
        QZ.append(Item(f"v_add_u32 v{A.VR0+k}, s{A.sDL}, v{A.VR0+k}", "v", base))
    QS.append(Item(f"s_lshr_b32 s{A.sMK}, s{A.sMK}, 1", "s", base + 8))
    QS.append(Item(f"s_and_b32 s{sCS}, s{A.sMK}, 1", "s", base + 8))
    QS.append(Item(flagcmp, "v", end - 3, needs=fl1, delay=2))
    schedule(e, M, [QC, QL, QS] + QV + [QZ], ASLOTS, spread=True, seed=seed)
    lab = e.newlabel("cpe")
    back = e.newlabel("cpeb")
    e(f"s_or_b64 s[{sCF}:{sCF+1}], s[{sCF}:{sCF+1}], s[{sCS}:{sCS+1}]")
    e.branch(f"s_cbranch_scc1 {lab}", fence=False)
    e.label(back)

    def f(e):
        e.label(lab, full_fence=True)
        a_spin(e)
        e(f"s_cmp_eq_u32 s{sCS}, 0")
        e(f"s_cbranch_scc1 {back}")
        e(f"s_cmp_eq_u32 s{A.sMK}, 1")
        e(f"s_cbranch_scc1 L_A{R}_epi")
        e(f"s_mov_b32 s{A.sTHR}, {f32(THR)}")
        e(f"s_mov_b32 s{A.sFLOOR}, 0")
        e(f"s_cmp_lg_u32 s{A.sMK}, {(1 << (16 - QSTEP)) | 1}")
        e(f"s_cbranch_scc1 {back}")
        e(f"s_call_b64 s[{sRET}:{sRET+1}], L_qwork{R}")
        e(f"s_branch {back}")
    ool.append(f)
    e.lg = [("k", t[1]) if isinstance(t, tuple) and t[0] == "kn" else t for t in e.lg]


def a_rare(e, r):
    e.label(f"L_rare{r}", full_fence=True)
    b = A.S + 8 * r
    e("s_waitcnt lgkmcnt(0)")
    e(f"v_max3_f32 v{A.T0}, v{b}, v{b+1}, v{b+2}")
    e(f"v_max3_f32 v{A.T0}, v{A.T0}, v{b+3}, v{b+4}")
    e(f"v_max3_f32 v{A.T0}, v{A.T0}, v{b+5}, v{b+6}")
    e(f"v_max_f32 v{A.T0}, v{A.T0}, v{b+7}")
    e(f"v_mov_b32 v{A.T1}, v{A.T0}")
    e(f"v_permlane32_swap_b32 v{A.T0}, v{A.T1}")
    e(f"v_max_f32 v{A.T0}, v{A.T0}, v{A.T1}")
    e(f"v_mov_b32 v{A.T1}, v{A.T0}")
    e(f"v_permlane16_swap_b32 v{A.T0}, v{A.T1}")
    e(f"v_max_f32 v{A.T0}, v{A.T0}, v{A.T1}")
    e(f"v_max_f32 v{A.T0}, s{A.sFLOOR}, v{A.T0}")
    for i in range(8):
        e(f"v_sub_f32 v{b+i}, v{b+i}, v{A.T0}")
    for i in range(4):
        e(f"v_sub_f32 v{A.C+4*r+i}, v{A.C+4*r+i}, v{A.T0}")
    skip = e.newlabel("rfirst")
    e(f"s_cmp_lg_u32 s{A.sFLOOR}, 0")
    e(f"s_cbranch_scc1 {skip}")
    e(f"v_exp_f32 v{A.T1}, -v{A.T0}")
    for i in range(4):
        e(f"v_mul_f32 v{A.L+4*r+i}, v{A.L+4*r+i}, v{A.T1}")
    for i in range(32):
        e(f"v_mul_f32 v{A.O+32*r+i}, v{A.O+32*r+i}, v{A.T1}")
    e.label(skip)
    e(f"ds_read_b32 v{A.FL}, v{A.FLA} offset:{CA}")
    e("s_waitcnt lgkmcnt(0)")
    e.fence()
    e("s_nop 1")
    e(f"s_setpc_b64 s[{sRET}:{sRET+1}]")


def a_reset(e):
    for i in range(96):
        e(f"v_mov_b32 v{A.O+i}, 0")
    for i in range(24):
        e(f"v_mov_b32 v{A.L+i}, 0")
    e(f"s_mov_b32 s{A.sTHR}, 0xff800000")
    e(f"s_mov_b32 s{A.sFLOOR}, 0xff800000")
    e(f"s_mov_b32 s{A.sMK}, {(1 << 16) | (1 << QSTEP) | 2}")


def a_epilogue(e, R):
    if R == 3:
        e(f"s_cmp_eq_u32 s{A.sGEN}, 0")
        e(f"s_mov_b32 s{A.sT}, {LDS_QT2}")
        e(f"s_cselect_b32 s{A.sT}, {LDS_QT1}, s{A.sT}")
        e(f"s_cmp_eq_u32 s{A.sGEN}, 2")
        e(f"s_cselect_b32 s{A.sT}, {LDS_R2+16384}, s{A.sT}")
        e(f"v_lshlrev_b32 v{A.T2}, 4, v0")
        e(f"v_add_u32 v{A.T2}, s{A.sT}, v{A.T2}")
        for i in range(8):
            e(f"ds_read_b128 {vr(A.Q+4*i)}, v{A.T2} offset:{1024*i}", "qn")
    e(f"v_lshlrev_b32 v{A.T2}, 4, v0")
    for r in range(R):
        e(f"v_rcp_f32 v{A.T0}, v{A.L+4*r}")
        if r < 2:
            e(f"s_lshl_b32 s{A.sT}, s{sW}, 11")
            e(f"s_add_u32 s{A.sT}, s{A.sT}, s{A.sOOFF}")
            if r == 1:
                e(f"s_add_u32 s{A.sT}, s{A.sT}, 1024")
        else:
            e(f"s_add_u32 s{A.sT}, s{A.sOOFF}, 8192")
        for s in range(4):
            o = A.O + 32 * r + 8 * s
            for i in range(8):
                e(f"v_mul_f32 v{o+i}, v{o+i}, v{A.T0}")
            for i in range(4):
                e(f"v_cvt_pk_bf16_f32 v{o+i}, v{o+2*i}, v{o+2*i+1}")
            e(f"buffer_store_dwordx4 {vr(o)}, v{A.T2}, {sr(S_WS)}, s{A.sT} offen sc1", "ost")
            if s < 3:
                e(f"s_add_u32 s{A.sT}, s{A.sT}, 9216")
    e(f"s_add_u32 s{A.sOOFF}, s{A.sOOFF}, 36864")


def gen_A(e):
    ool = []
    if "noprio" not in EXP:
        e("s_setprio 2")
    e.raw("    s_getpc_b64 s[4:5]")
    e.raw("L_pc0:")
    e.raw(f"    s_sub_u32 s4, s4, L_pc0-{NAME}_kernel")
    e.raw(f"    s_subb_u32 s5, s5, 0")
    e(f"v_lshlrev_b32 v{A.T2}, 7, v0")
    e(f"s_lshl_b32 s{A.sT}, s{sW}, 13")
    e(f"v_add_u32 v{A.T2}, s{A.sT}, v{A.T2}")
    e.raw(f"    v_min_u32 v{A.T2}, L_end-{NAME}_kernel, v{A.T2}")
    e.raw(f"    global_load_dword v{A.S}, v{A.T2}, s[4:5]")
    e(f"v_lshrrev_b32 v{A.T1}, 4, v0")
    e(f"v_lshlrev_b32 v{A.T2}, 1, v{A.T1}")
    e(f"v_and_b32 v{A.T0}, 7, v0")
    e(f"v_xor_b32 v{A.T0}, v{A.T0}, v{A.T2}")
    e(f"v_lshrrev_b32 v{A.T2}, 3, v0")
    e(f"v_lshlrev_b32 v{A.DMA}, 8, v{A.T2}")
    e(f"v_lshl_add_u32 v{A.DMA}, v{A.T0}, 4, v{A.DMA}")
    e(f"v_and_b32 v{A.T0}, 15, v0")
    e(f"v_and_b32 v{A.T2}, 6, v0")
    e(f"v_xor_b32 v{A.T2}, v{A.T2}, v{A.T1}")
    e(f"v_lshlrev_b32 v{A.KR0}, 7, v{A.T0}")
    e(f"v_lshl_add_u32 v{A.KR0}, v{A.T2}, 4, v{A.KR0}")
    e(f"v_xor_b32 v{A.KR1}, 64, v{A.KR0}")
    e(f"v_lshrrev_b32 v{A.T0}, 2, v0")
    e(f"v_lshlrev_b32 v{A.VR0}, 7, v{A.T0}")
    e(f"v_bfe_u32 v{A.T2}, v0, 3, 2")
    e(f"v_lshl_add_u32 v{A.VR0}, v{A.T2}, 5, v{A.VR0}")
    e(f"v_and_b32 v{A.T2}, 3, v0")
    e(f"v_lshl_add_u32 v{A.VR0}, v{A.T2}, 3, v{A.VR0}")
    for k in range(1, 4):
        e(f"v_xor_b32 v{A.VR0+k}, {32*k}, v{A.VR0}")
    e(f"v_lshlrev_b32 v{A.FLA}, 2, v0")
    e(f"v_add_u32 v{A.FLA}, {LDS_FL}, v{A.FLA}")
    for k in range(4):
        e(f"v_mov_b32 v{A.ONE+k}, 0x3f803f80")
    e(f"s_lshl_b32 s{A.cK1}, s{sW}, 10")
    e(f"s_add_u32 s{A.cK2}, s{A.cK1}, {4096-128}")
    e(f"s_add_u32 s{A.cV1}, s{A.cK1}, 8192")
    e(f"s_add_u32 s{A.cV2}, s{A.cK2}, 8192")
    e(f"s_lshl_b32 s{A.sG}, s{sB}, 3")
    e(f"s_add_u32 s{A.sG}, s{A.sG}, s{sJ}")
    e(f"s_lshl_b32 s{A.sG}, s{A.sG}, 19")
    e(f"s_lshl_b32 s{A.sT}, s{sW}, 11")
    e(f"s_add_u32 s{A.sG}, s{A.sG}, s{A.sT}")
    e(f"s_mov_b32 s{A.sPH}, {(-(NT-1)*16384) & 0xffffffff}")
    e(f"s_lshl_b32 s{A.sT}, s{sPAIR}, 3")
    e(f"s_add_u32 s{A.sT}, s{A.sT}, s{sJ}")
    e(f"s_mul_i32 s{A.sOOFF}, s{A.sT}, {4*36864}")
    e(f"s_mov_b32 s{A.sWR}, 0")
    e(f"s_mov_b32 s{A.sGEN}, 0")
    e(f"s_mov_b32 s{A.sLEFT}, 63")
    e(f"s_mov_b32 s{sCS+1}, 0")
    a_reset(e)
    lab = e.newlabel("noinit")
    e(f"s_cmp_lg_u32 s{sW}, 0")
    e(f"s_cbranch_scc1 {lab}")
    a_flaginit(e)
    e.label(lab)
    e(f"s_mov_b32 s{A.sT}, {4*KVAT}")
    flag_wait(e, A.FL, A.FLA, A.sT, CG, sleep=2)
    for t in range(NT):
        for it in a_dma_items("k", 0):
            it.emit(e)
        e(f"s_waitcnt vmcnt({KVW})")
        if t < NT - 1:
            for it in a_dma_items("v", 0):
                it.emit(e)
            e(f"s_waitcnt vmcnt({KVW})")
    e(f"s_mov_b32 s{A.sT}, 4")
    flag_wait(e, A.FL, A.FLA, A.sT, CQ, sleep=1)
    ts(e, A.T0, A.T1, True)
    e(f"s_mov_b32 s{A.sT}, {LDS_R1}")
    a_qread(e, A.sT, A.Q, A.Q + 32)
    lab = e.newlabel("q1skip")
    e(f"s_cmp_eq_u32 s{sW}, 0")
    e(f"s_cbranch_scc1 {lab}")
    e(f"s_mov_b32 s{A.sT}, {LDS_R2}")
    a_qread(e, A.sT, A.O + 64, A.Q + 32)
    e.label(lab)
    e("s_waitcnt lgkmcnt(0)")
    e(f"ds_inc_u32 v{A.FLA}, v{A.ONE} offset:{CP}")
    e(f"s_waitcnt vmcnt({NSTEADY})")
    e.lg, e.vm = [], []
    e(f"s_mov_b32 s{A.sF}, 4")
    e(f"ds_inc_u32 v{A.FLA}, v{A.ONE} offset:{CA}")
    flag_wait(e, A.FL, A.FLA, A.sF, CA, sleep=0)
    for i in range(8):
        e(a_kread(A.FP + 4 * i, i), ("k", i))
    e("s_waitcnt lgkmcnt(0)")
    e(f"s_cmp_eq_u32 s{sW}, 0")
    e.branch("s_cbranch_scc1 L_A3_0")
    for R in (2, 3):
        e.raw(".p2align 6")
        c, seed = best_seed(lambda t, sd: a_step(t, R, 0, [], sd), [("k", i) for i in range(8)], TRIALS)
        print(f"A R={R}: est {c} seed {seed}", file=sys.stderr)
        for p in range(3):
            e.label(f"L_A{R}_{p}")
            if p == 0:
                e.hist = []
            e.lg = [("k", i) for i in range(8)]
            a_step(e, R, p, ool, seed)
        e.branch(f"s_branch L_A{R}_0")
        e.label(f"L_A{R}_epi", full_fence=True)
        ts(e, A.T0, A.T1, True)
        a_epilogue(e, R)
        e(f"s_add_u32 s{A.sGEN}, s{A.sGEN}, 1")
        e(f"s_cmp_eq_u32 s{A.sGEN}, 4")
        e.branch("s_cbranch_scc1 L_A_end")
        if R == 2:
            for i in range(32):
                e(f"v_mov_b32 v{A.Q+i}, v{A.O+64+i}")
        a_reset(e)
        e("s_waitcnt lgkmcnt(0)")
        ts(e, A.T0, A.T1)
        e.fence()
        if R == 2:
            for g in (1, 2, 3):
                nx = e.newlabel("nx")
                e(f"s_cmp_lg_u32 s{A.sGEN}, {g}")
                e(f"s_cbranch_scc1 {nx}")
                e(f"s_cmp_eq_u32 s{sW}, {g}")
                e(f"s_cbranch_scc1 L_A3_{g%3}")
                e(f"s_branch L_A2_{g%3}")
                e.label(nx)
        else:
            for g in (1, 2):
                e(f"s_cmp_eq_u32 s{A.sGEN}, {g}")
                e(f"s_cbranch_scc1 L_A2_{g%3}")
            e(f"s_branch L_A2_0")
    e.label("L_A_end")
    e.hist = []
    e("s_waitcnt vmcnt(0) lgkmcnt(0)")
    e(f"s_add_u32 s{A.sF}, s{A.sF}, 4")
    e(f"ds_inc_u32 v{A.FLA}, v{A.ONE} offset:{CA}")
    ts(e, A.T0, A.T1)
    e(f"s_cmp_lg_u32 s{sW}, 0")
    e("s_cbranch_scc1 L_bail")
    flag_wait(e, A.FL, A.FLA, A.sF, CA, sleep=0)
    e.vm = []
    a_signal(e)
    e.branch("s_branch L_bail")
    k = 0
    while k < len(ool):
        ool[k](e)
        k += 1
    for r in range(3):
        a_rare(e, r)
    for R in (2, 3):
        e.label(f"L_qwork{R}", full_fence=True)
        e.lg = []
        a_qstep_work(e, R, ool)
        e.fence()
        e(f"s_setpc_b64 s[{sRET}:{sRET+1}]")


class G:
    T0, T1, T2 = 1, 2, 3
    FLA, BIG, FL = 4, 5, 7
    XDMA, WD0, WD1, WB, XR0, XR1, QST, XB0 = 8, 9, 10, 11, 15, 16, 17, 18
    B = 20
    AF = 56
    ACC = 88
    LB1, LB1b, LB2, ODMA, ODMA5, OB, O5 = 4, 5, 6, 7, 8, 9, 13
    OBF = 16
    OAF = 52
    OACC = 92
    sF, sX, sWq, sTASK, sQOFF, sT, sT2, sSC, sXB, sXW, sXR, sKX, sCNT, cX, cW, sT3 = range(70, 86)
    sEX = 86
    sNX, sNW, sW0, sWE, sR0 = 92, 93, 94, 95, 96
    sTB = 6
    sO, sWo, sLB, sE, sP, sSH = 71, 72, 74, 77, 78, 79


def g_dma_x_items(tag, after=-1):
    I = lambda t, k, tg=None: Item(t, k, after, tag=tg)
    out = [I(f"s_add_u32 m0, s{G.sXW}, s{G.cX}", "s"), I(f"s_add_u32 s{G.sT}, s{G.sX}, s{G.sKX}", "s")]
    for k in range(4):
        if k:
            out.append(I(f"s_add_u32 m0, m0, 1024", "s"))
            out.append(I(f"s_add_u32 s{G.sT}, s{G.sT}, {8*1152}", "s"))
        out.append(I(f"buffer_load_dwordx4 v{G.XDMA}, {sr(S_X)}, s{G.sT} offen lds", "d", tag))
    out += [
        I(f"s_add_u32 m0, s{G.sXW}, s{G.sT2}", "s"),
        I(f"s_add_u32 s{G.sT}, s{G.sXB}, s{G.sKX}", "s"),
        I(f"s_mov_b64 exec, s[{G.sEX}:{G.sEX+1}]\nbuffer_load_dwordx4 v{G.XDMA}, {sr(S_X)}, s{G.sT} offen lds\ns_mov_b64 exec, -1", "d", tag),
        I(f"s_add_u32 s{G.sKX}, s{G.sKX}, 128", "s"),
        I(f"s_cmp_eq_u32 s{G.sKX}, {9*128}\ns_cselect_b32 s{G.sKX}, 0, s{G.sKX}", "s"),
        I(f"s_sub_u32 s{G.sNX}, s{G.sNX}, 1\ns_cselect_b32 s{G.sKX}, {OOB}, s{G.sKX}\ns_cselect_b32 s{G.cX}, 0x18000, s{G.cX}\ns_cselect_b32 s{G.sT2}, 0x18000, s{G.sT2}", "s"),
        I(f"s_add_u32 s{G.sXW}, s{G.sXW}, {XST}", "s"),
        I(f"s_cmp_eq_u32 s{G.sXW}, {LDS_X + NX*XST}\ns_cselect_b32 s{G.sXW}, {LDS_X}, s{G.sXW}", "s"),
    ]
    return out


def g_dma_w_items(par, tag, after=-1):
    I = lambda t, k, tg=None: Item(t, k, after, tag=tg)
    out = []
    for rg in range(4):
        out.append(I(f"s_add_u32 m0, s{G.cW}, {par*4096 + rg*1024}", "s"))
        out.append(I(f"buffer_load_dwordx4 v{G.WD1 if rg&1 else G.WD0}, {sr(S_WQ)}, s{G.sWq} offen lds", "d", tag))
        out.append(I(f"s_add_u32 s{G.sWq}, s{G.sWq}, {8*8192}", "s"))
    out.append(I(f"s_cmp_eq_u32 s{G.sWq}, s{G.sWE}\ns_cselect_b32 s{G.sWq}, s{G.sW0}, s{G.sWq}", "s"))
    out.append(I(f"s_sub_u32 s{G.sNW}, s{G.sNW}, 1\ns_cselect_b32 s{G.sWq}, {OOB}, s{G.sWq}\ns_cselect_b32 s{G.cW}, 0x30000, s{G.cW}", "s"))
    return out


def g_reads_A(par):
    return [f"ds_read_b64_tr_b16 {vr(G.AF + 16*par + 4*j + 2*hh, 2)}, v{G.WB+j} offset:{par*4096 + hh*512}"
            for j in range(4) for hh in range(2)]


def g_read_B(i, s1):
    if "noB" in EXP:
        return f"ds_read_b32 v{G.B+4*i}, v{G.XR1 if s1 else G.XR0} offset:{i*2048}"
    return f"ds_read_b128 {vr(G.B+4*i)}, v{G.XR1 if s1 else G.XR0} offset:{i*2048}"


def g_arrive(e):
    e(f"s_add_u32 s{G.sF}, s{G.sF}, 4")
    e(f"ds_inc_u32 v{G.FLA}, v{G.BIG} offset:{CG}", "flw")


def g_step(e, par, ool):
    M = []
    for i in range(9):
        for j in range(4):
            d = G.ACC + 16 * i + 4 * j
            pre = None
            if j == 0:
                pre = (lambda e, i=i: e.wait_lg(lambda t: t == ("a", 0) or t == ("b", 0, i)))
            M.append((f"v_mfma_f32_16x16x32_bf16 {vr(d)}, {vr(G.AF + 16*par + 4*j)}, {vr(G.B+4*i)}, {vr(d)}", pre))
    QB = []
    if par == 1:
        QB += [Item(f"s_add_u32 s{G.sXR}, s{G.sXR}, {XST}", "s", -1, 3),
               Item(f"s_cmp_eq_u32 s{G.sXR}, {LDS_X + NX*XST}\ns_cselect_b32 s{G.sXR}, {LDS_X}, s{G.sXR}", "s", -1, 3),
               Item(f"v_add_u32 v{G.XR0}, s{G.sXR}, v{G.XB0}", "v", -1, 3),
               Item(f"v_xor_b32 v{G.XR1}, 64, v{G.XR0}", "v", -1, 3)]
    QB += [Item(g_read_B(i, par ^ 1), "l", 4 * i + 3, tag=("b", 1, i)) for i in range(9)]
    def wv(e):
        if TS == 3:
            e("s_memtime s[14:15]")
        e.wait_vm(lambda t: t == ("w", 1))
        if TS == 3:
            e("s_memtime s[16:17]")
            e("s_waitcnt lgkmcnt(0)")
            e("s_sub_u32 s16, s16, s14")
            e("s_add_u32 s18, s18, s16")
    QA = [Item(wv, "s", 0)]
    QA += [Item(x, "l", 0, tag=("a", 1)) for x in g_reads_A(par ^ 1)]
    QA += [Item(lambda e: e.wait_lg(lambda t: t == ("a", 1)), "s", 14)]
    QA += g_dma_w_items(par ^ 1, ("w", 3), 14)
    if par == 1:
        w0 = Item(lambda e: e.wait_lg(lambda t: isinstance(t, tuple) and t[0] == "b" and t[1] == 0), "s", 5)
    else:
        w0 = Item(lambda e: e.wait_vm(lambda t: t == ("x", 1)), "s", 5)
    flr = Item(f"ds_read_b32 v{G.FL}, v{G.FLA} offset:{CG}", "l", 18 if par else 25, 21 if par else 28, tag="fl")

    def fcmp(e):
        e.wait_lg(lambda t: t == "fl")
        e(f"v_cmp_gt_u32 vcc, s{G.sF}, v{G.FL}")

    def fbr(e):
        lab = e.newlabel("spin")
        back = e.newlabel("spinb")
        e.branch(f"s_cbranch_vccnz {lab}", fence=False)
        e.label(back)

        def f(e):
            e.label(lab)
            e.hist = []
            flag_wait(e, G.FL, G.FLA, G.sF, CG, sleep=0)
            e(f"s_branch {back}")
        ool.append(f)
    fc = Item(fcmp, "v", 0, needs=flr, delay=3)
    QS = [w0,
          Item(f"ds_inc_u32 v{G.FLA}, v{G.BIG} offset:{CG}", "w", 5, 12, tag="flw"),
          Item(f"s_add_u32 s{G.sF}, s{G.sF}, 4", "s", 5),
          flr, fc]
    QA += [Item(fbr, "b", 0, needs=fc, delay=2)]
    if par == 1:
        QA += g_dma_x_items(("x", 3), 0)
    schedule(e, M, [QS, QB, QA])

    def dec(t):
        if not isinstance(t, tuple):
            return t
        if t[0] == "x" and par == 0:
            return t
        return (t[0], t[1] - 1) + tuple(t[2:])
    e.vm = [dec(t) for t in e.vm]
    e.lg = [dec(t) for t in e.lg]


def o_tiles():
    return [(i, j) for i in range(9) for j in range(5) if j < 4 or i < 5]


OSTB = 5120


def gen_G(e):
    ool = []
    e(f"v_lshrrev_b32 v{G.T1}, 4, v0")
    e(f"v_and_b32 v{G.T0}, 7, v0")
    e(f"v_lshrrev_b32 v{G.T2}, 3, v0")
    e(f"v_lshlrev_b32 v{G.FL}, 1, v{G.T1}")
    e(f"v_xor_b32 v{G.FL}, v{G.FL}, v{G.T0}")
    e(f"v_mul_u32_u24 v{G.XDMA}, 1152, v{G.T2}")
    e(f"v_lshl_add_u32 v{G.XDMA}, v{G.FL}, 4, v{G.XDMA}")
    e(f"v_and_b32 v{G.FL}, 1, v{G.T1}")
    e(f"v_lshlrev_b32 v{G.FL}, 1, v{G.FL}")
    e(f"v_xor_b32 v{G.FL}, v{G.FL}, v{G.T0}")
    e(f"v_lshlrev_b32 v{G.WD0}, 13, v{G.T2}")
    e(f"v_lshl_add_u32 v{G.WD0}, v{G.FL}, 4, v{G.WD0}")
    e(f"v_xor_b32 v{G.WD1}, 64, v{G.WD0}")
    e(f"s_mul_i32 s{G.sXB}, s{sB}, 165888")
    e(f"s_mul_i32 s{G.sX}, s{sW}, {32*1152}")
    e(f"s_add_u32 s{G.sX}, s{G.sX}, s{G.sXB}")
    e(f"s_lshr_b32 s{G.sT}, s{sW}, 1")
    e(f"s_mul_i32 s{G.sT}, s{G.sT}, {8*1152}")
    e(f"s_add_u32 s{G.sXB}, s{G.sXB}, s{G.sT}")
    e(f"s_add_u32 s{G.sXB}, s{G.sXB}, {128*1152}")
    e(f"s_lshl_b32 s{G.sW0}, s{sJ}, 10")
    e(f"s_lshl_b32 s{G.sT}, s{sW}, 7")
    e(f"s_add_u32 s{G.sW0}, s{G.sW0}, s{G.sT}")
    e(f"s_and_b32 s{G.sR0}, s{sPAIR}, 3")
    e(f"s_lshl_b32 s{G.sR0}, s{G.sR0}, 1")
    e(f"s_add_u32 s{G.sR0}, s{G.sR0}, s{sJ}")
    if "norot" in EXP:
        e(f"s_mov_b32 s{G.sR0}, 0")
    e(f"s_and_b32 s{G.sT}, s{sW}, 1")
    e(f"s_cmp_eq_u32 s{G.sT}, 0")
    e(f"s_cselect_b32 s{G.sEX}, -1, 0")
    e(f"s_cselect_b32 s{G.sEX+1}, 0, -1")
    e(f"s_mov_b32 s{G.sTASK}, 0")
    e(f"s_mov_b32 s{G.sF}, 0")
    e.label("L_G_task")
    e(f"s_lshl_b32 s{G.cW}, s{sW}, 13")
    e(f"s_add_u32 s{G.cW}, s{G.cW}, {LDS_W}")
    e(f"s_lshl_b32 s{G.cX}, s{sW}, 12")
    e(f"s_mov_b32 s{G.sXW}, {LDS_X}")
    e(f"s_mov_b32 s{G.sXR}, {LDS_X}")
    e(f"s_sub_u32 s{G.sT}, s{G.sR0}, 9")
    e(f"s_cselect_b32 s{G.sT}, s{G.sR0}, s{G.sT}")
    e(f"s_lshl_b32 s{G.sKX}, s{G.sT}, 7")
    e(f"s_lshl_b32 s{G.sWq}, s{G.sT}, 19")
    e(f"s_add_u32 s{G.sWq}, s{G.sWq}, s{G.sW0}")
    e(f"s_add_u32 s{G.sWE}, s{G.sW0}, {576*8192}")
    e(f"s_mov_b32 s{G.sNX}, 8")
    e(f"s_mov_b32 s{G.sNW}, 17")
    e(f"s_lshr_b32 s{G.sT2}, s{sW}, 1")
    e(f"s_lshl_b32 s{G.sT2}, s{G.sT2}, 10")
    e(f"s_add_u32 s{G.sT2}, s{G.sT2}, 16384")
    e.vm, e.lg = [], []
    run = lambda items: [it.emit(e) for it in items]
    run(g_dma_x_items(("x", 0)))
    run(g_dma_w_items(0, ("w", 0)))
    run(g_dma_x_items(("x", 1)))
    run(g_dma_w_items(1, ("w", 1)))
    e(f"v_and_b32 v{G.T0}, 15, v0")
    e(f"v_lshrrev_b32 v{G.T1}, 4, v0")
    e(f"v_lshlrev_b32 v{G.QST}, 4, v{G.T0}")
    e(f"v_lshrrev_b32 v{G.T2}, 1, v{G.T1}")
    e(f"v_lshl_add_u32 v{G.QST}, v{G.T2}, 8, v{G.QST}")
    e(f"v_and_b32 v{G.T2}, 1, v{G.T1}")
    e(f"v_lshl_add_u32 v{G.QST}, v{G.T2}, 3, v{G.QST}")
    e(f"v_and_b32 v{G.FL}, 6, v0")
    e(f"v_xor_b32 v{G.FL}, v{G.FL}, v{G.T1}")
    e(f"v_lshlrev_b32 v{G.XB0}, 7, v{G.T0}")
    e(f"v_lshl_add_u32 v{G.XB0}, v{G.FL}, 4, v{G.XB0}")
    e(f"v_lshlrev_b32 v{G.WB}, 10, v{G.T1}")
    e(f"v_bfe_u32 v{G.T0}, v0, 2, 2")
    e(f"v_lshl_add_u32 v{G.WB}, v{G.T0}, 7, v{G.WB}")
    e(f"v_bfe_u32 v{G.T0}, v0, 3, 2")
    e(f"v_lshl_add_u32 v{G.WB}, v{G.T0}, 5, v{G.WB}")
    e(f"v_and_b32 v{G.T0}, 3, v0")
    e(f"v_lshl_add_u32 v{G.WB}, v{G.T0}, 3, v{G.WB}")
    for k in range(1, 4):
        e(f"v_xor_b32 v{G.WB+k}, {32*k}, v{G.WB}")
    for k in range(4):
        e(f"v_add_u32 v{G.WB+k}, s{G.cW}, v{G.WB+k}")
    e(f"v_lshlrev_b32 v{G.FLA}, 2, v0")
    e(f"v_add_u32 v{G.FLA}, {LDS_FL}, v{G.FLA}")
    e(f"v_mov_b32 v{G.BIG}, 0x7fffffff")
    e(f"s_lshr_b32 s{G.sT}, s{sW}, 1")
    e(f"s_mul_i32 s{G.sQOFF}, s{G.sT}, 36864")
    e(f"s_add_u32 s{G.sQOFF}, s{G.sQOFF}, {LDS_R1}")
    e(f"s_and_b32 s{G.sT}, s{sW}, 1")
    e(f"s_lshl_b32 s{G.sT}, s{G.sT}, 11")
    e(f"v_add_u32 v{G.QST}, s{G.sT}, v{G.QST}")
    e(f"s_mov_b32 s{G.sSC}, {f32(math.log2(math.e) / math.sqrt(128.0))}")
    e(f"v_add_u32 v{G.XR0}, s{G.sXR}, v{G.XB0}")
    e(f"v_xor_b32 v{G.XR1}, 64, v{G.XR0}")
    for i in range(144):
        e(f"v_mov_b32 v{G.ACC+i}, 0")
    ts(e, G.T0, G.T1)
    e.wait_vm(lambda t: t in (("x", 0), ("w", 0)))
    ts(e, G.T0, G.T1)
    g_arrive(e)
    for x in g_reads_A(0):
        e(x, ("a", 0))
    flag_wait(e, G.FL, G.FLA, G.sF, CG, sleep=0)
    for i in range(9):
        e(g_read_B(i, 0), ("b", 0, i))
    run(g_dma_w_items(0, ("w", 2)))
    run(g_dma_x_items(("x", 2)))
    e("s_waitcnt lgkmcnt(0)")
    e.fence()
    e(f"s_mov_b32 s{G.sCNT}, 9")
    e.raw(".p2align 6")
    e.label("L_G_loop")
    if "gts" in EXP:
        ts(e, G.T0, G.T1)
    vm0 = [("x", 1)] * 5 + [("w", 1)] * 4 + [("w", 2)] * 4 + [("x", 2)] * 5
    e.vm = list(vm0)
    e.lg = [("a", 0)] * 8 + [("b", 0, i) for i in range(9)]
    e.throttle = GTHQ
    e.nodma = "s[44:47]" if "noW" in EXP else ("s[32:35]" if "noX" in EXP else ("buffer" if "noD" in EXP else ""))
    g_step(e, 0, ool)
    g_step(e, 1, ool)
    e.nodma = ""
    e.throttle = 0
    assert e.vm == vm0[-len(e.vm):], e.vm
    e(f"s_sub_u32 s{G.sCNT}, s{G.sCNT}, 1")
    e(f"s_cmp_lg_u32 s{G.sCNT}, 0")
    e.branch("s_cbranch_scc1 L_G_loop")
    ts(e, G.T0, G.T1, True)
    e("s_waitcnt lgkmcnt(0)")
    e.vm, e.lg = [], []
    g_arrive(e)
    e(f"v_add_u32 v{G.T0}, s{G.sQOFF}, v{G.QST}")
    e(f"s_lshr_b32 s{G.sT2}, s{sW}, 1")
    e(f"s_add_u32 s{G.sT2}, s{G.sT2}, s{G.sTASK}")
    e(f"s_cmp_eq_u32 s{G.sT2}, 1")
    e(f"s_cselect_b32 s{G.sT}, {LDS_QT1}, s{G.sQOFF}")
    e(f"v_add_u32 v{G.T1}, s{G.sT}, v{G.QST}")
    e(f"s_cmp_eq_u32 s{G.sT2}, 2")
    e(f"s_cselect_b32 s{G.sT}, {LDS_QT2-8192}, s{G.sQOFF}")
    e(f"v_add_u32 v{G.T2}, s{G.sT}, v{G.QST}")

    def qpack(i, j):
        d = G.ACC + 16 * i + 4 * j
        for k in range(4):
            e(f"v_mul_f32 v{d+k}, s{G.sSC}, v{d+k}")
        e(f"v_cvt_pk_bf16_f32 v{d}, v{d}, v{d+1}")
        e(f"v_cvt_pk_bf16_f32 v{d+1}, v{d+2}, v{d+3}")

    def qwrite(i, j):
        d = G.ACC + 16 * i + 4 * j
        b = G.T1 if i < 2 else (G.T2 if i < 4 else G.T0)
        e(f"ds_write_b64 v{b}, {vr(d,2)} offset:{4096*i + 512*j}")
    tl = [(i, j) for i in range(9) for j in range(4)]
    for t in tl[:6]:
        qpack(*t)
    flag_wait(e, G.FL, G.FLA, G.sF, CG, sleep=0)
    for n, t in enumerate(tl):
        qwrite(*t)
        if n + 6 < len(tl):
            qpack(*tl[n + 6])
    e(f"s_add_u32 s{G.sTASK}, s{G.sTASK}, 2")
    e("s_waitcnt lgkmcnt(0)")
    e.lg = []
    e(f"ds_inc_u32 v{G.FLA}, v{G.BIG} offset:{CQ}")
    ts(e, G.T0, G.T1)
    e(f"s_lshl_b32 s{G.sT2}, s{G.sTASK}, 1")
    flag_wait(e, G.FL, G.FLA, G.sT2, CP, sleep=1)
    e(f"s_add_u32 s{G.sW0}, s{G.sW0}, 512")
    e(f"s_cmp_lt_u32 s{G.sTASK}, 4")
    e.branch("s_cbranch_scc1 L_G_task")

    tiles = o_tiles()
    acc = {t: G.OACC + 4 * k for k, t in enumerate(tiles)}
    e(f"s_lshr_b32 s{G.sP}, s{sJ}, 1")
    e(f"s_and_b32 s{G.sE}, s{sJ}, 1")
    e(f"v_lshlrev_b32 v{G.T0}, 4, v0")
    e(f"s_lshl_b32 s{G.sT}, s{G.sE}, 12")
    e(f"v_add_u32 v{G.LB1}, s{G.sT}, v{G.T0}")
    e(f"v_add_u32 v{G.LB1b}, 4096, v{G.LB1}")
    e(f"s_cmp_eq_u32 s{G.sE}, 0")
    e(f"s_cselect_b32 s{G.sT}, 5120, 0")
    e(f"v_add_u32 v{G.LB2}, s{G.sT}, v{G.T0}")
    e(f"v_lshrrev_b32 v{G.T1}, 4, v0")
    e(f"v_lshlrev_b32 v{G.T1}, 1, v{G.T1}")
    e(f"v_and_b32 v{G.T0}, 7, v0")
    e(f"v_xor_b32 v{G.T0}, v{G.T0}, v{G.T1}")
    e(f"v_lshrrev_b32 v{G.T2}, 3, v0")
    e(f"v_mul_u32_u24 v{G.ODMA}, 1152, v{G.T2}")
    e(f"v_lshl_add_u32 v{G.ODMA}, v{G.T0}, 4, v{G.ODMA}")
    e(f"s_lshl_b32 s{G.sT}, s{sJ}, 7")
    e(f"v_add_u32 v{G.ODMA}, s{G.sT}, v{G.ODMA}")
    e(f"v_lshrrev_b32 v{G.ODMA5}, 1, v0")
    e(f"v_mul_u32_u24 v{G.ODMA5}, 1152, v{G.ODMA5}")
    e(f"v_and_b32 v{G.T2}, 1, v0")
    e(f"v_lshl_add_u32 v{G.ODMA5}, v{G.T2}, 4, v{G.ODMA5}")
    e(f"s_lshl_b32 s{G.sT}, s{G.sP}, 5")
    e(f"s_add_u32 s{G.sT}, s{G.sT}, 1024")
    e(f"v_add_u32 v{G.ODMA5}, s{G.sT}, v{G.ODMA5}")
    e(f"s_mul_i32 s{G.sLB}, s{sW}, 11264")
    e(f"s_add_u32 s{G.sLB}, s{G.sLB}, {LDS_OST}")
    e(f"v_lshrrev_b32 v{G.T0}, 2, v0")
    e(f"v_lshlrev_b32 v{G.OB}, 7, v{G.T0}")
    e(f"v_bfe_u32 v{G.T2}, v0, 3, 2")
    e(f"v_lshl_add_u32 v{G.OB}, v{G.T2}, 5, v{G.OB}")
    e(f"v_and_b32 v{G.T2}, 3, v0")
    e(f"v_lshl_add_u32 v{G.OB}, v{G.T2}, 3, v{G.OB}")
    for k in range(1, 4):
        e(f"v_xor_b32 v{G.OB+k}, {32*k}, v{G.OB}")
    for k in range(4):
        e(f"v_add_u32 v{G.OB+k}, s{G.sLB}, v{G.OB+k}")
    e(f"v_lshlrev_b32 v{G.O5}, 3, v0")
    e(f"v_add_u32 v{G.O5}, s{G.sLB}, v{G.O5}")
    e(f"s_lshl_b32 s{G.sT}, s{sPAIR}, 2")
    e(f"s_add_u32 s{G.sT}, s{G.sT}, s{sW}")
    e(f"s_mul_i32 s{G.sO}, s{G.sT}, {8*36864}")
    e(f"s_mul_i32 s{G.sWo}, s{sW}, {8*147456}")
    e(f"s_and_b32 s{G.sSH}, s{sW}, 1")
    e(f"s_lshl_b32 s{G.sSH}, s{G.sSH}, 4")
    e(f"s_mov_b32 s{G.sTASK}, 0")
    for q in range(8):
        e(f"s_add_u32 s{G.sT}, s{G.sR0}, {q}")
        e(f"s_and_b32 s{G.sT2}, s{G.sT}, 3")
        e(f"s_mul_i32 s{G.sTB+q}, s{G.sT2}, 9216")
        e(f"s_bitcmp1_b32 s{G.sT}, 2")
        e(f"s_cselect_b32 s{G.sT}, 147456, 0")
        e(f"s_add_u32 s{G.sTB+q}, s{G.sTB+q}, s{G.sT}")

    def woff(q):
        g, q = divmod(q, 8)
        return g * 147456 + (q >> 2) * 4 * 147456 + (q & 3) * 36864

    def boff(q):
        return (q >> 2) * 4 * 36864 + (q & 3) * 9216

    def dmaW(q, tag, after=-1):
        b = (q & 1) * OSTB
        I = lambda t, k, tg=None: Item(t, k, after, tag=tg)
        out = [I(f"s_lshl2_add_u32 s{G.sT}, s{G.sTB+(q&7)}, s{G.sWo}", "s")]
        if q >= 8:
            out.append(I(f"s_add_u32 s{G.sT}, s{G.sT}, 147456", "s"))
            out.append(I(f"s_cmp_eq_u32 s{G.sTASK}, 3\ns_cselect_b32 s{G.sT}, {OOB}, s{G.sT}", "s"))
        out.append(I(f"s_add_u32 m0, s{G.sLB}, {b + 4096}", "s"))
        out.append(I(f"buffer_load_dwordx4 v{G.ODMA5}, {sr(S_WO)}, s{G.sT} offen lds", "d", tag))
        for rg in range(4):
            out.append(I(f"s_add_u32 m0, s{G.sLB}, {b + rg*1024}", "s"))
            out.append(I(f"buffer_load_dwordx4 v{G.ODMA}, {sr(S_WO)}, s{G.sT} offen lds", "d", tag))
            if rg < 3:
                out.append(I(f"s_add_u32 s{G.sT}, s{G.sT}, {8*1152}", "s"))
        return out

    def loadB(i):
        if i < 4:
            return f"buffer_load_dwordx4 {vr(G.OBF+4*i)}, v{G.LB1}, {sr(S_WS)}, s{G.sT2} offen offset:{1024*i} sc1"
        if i == 4:
            return f"buffer_load_dwordx4 {vr(G.OBF+4*i)}, v{G.LB1b}, {sr(S_WS)}, s{G.sT2} offen sc1"
        return f"buffer_load_dwordx4 {vr(G.OBF+4*i)}, v{G.LB2}, {sr(S_WS)}, s{G.sT2} offen offset:{1024*(i-5)} sc1"

    def readsA(q):
        par = q & 1
        b = par * OSTB
        out = [f"ds_read_b64_tr_b16 {vr(G.OAF+20*par+4*j+2*u,2)}, v{G.OB+j} offset:{b + u*2048}"
               for j in range(4) for u in range(2)]
        out += [f"ds_read_b64_tr_b16 {vr(G.OAF+20*par+16+2*u,2)}, v{G.O5} offset:{b + 4096 + u*512}" for u in range(2)]
        return out

    e.vm, e.lg = [], []
    run(dmaW(0, ("w", 0)))
    run(dmaW(1, ("w", 1)))
    for i in range(164):
        e(f"v_mov_b32 v{G.OACC+i}, 0")
    e.wait_vm(lambda t: t == ("w", 0))
    for x in readsA(0):
        e(x, ("a", 0))
    e("s_waitcnt lgkmcnt(0)")
    e.lg = []
    run(dmaW(2, ("w", 2)))
    e(f"s_lshl_b32 s{G.sT}, s{sPAIR}, 3")
    e(f"v_mov_b32 v{G.T1}, s{G.sT}")
    e.label("L_O_init")
    e(f"s_sub_u32 s{sBUD}, s{sBUD}, 1")
    e("s_cbranch_scc1 L_bail")
    e(f"buffer_load_dword v{G.T0}, v{G.T1}, {sr(S_DBG)}, 0 offen sc1")
    e("s_waitcnt vmcnt(0)")
    e(f"v_cmp_gt_u32 vcc, 8, v{G.T0}")
    e("s_cbranch_vccnz L_O_init")
    e(f"s_lshl_b32 s{G.sT2}, s{sW}, 1")
    e(f"s_add_u32 s{G.sT}, s{G.sT}, s{G.sT2}")
    e(f"s_lshl_b32 s{G.sT}, s{G.sT}, 8")
    e(f"s_add_u32 s{G.sT}, s{G.sT}, {FLG}")
    e(f"v_and_b32 v14, 1, v0")
    e(f"v_lshlrev_b32 v14, 8, v14")
    e(f"v_add_u32 v14, s{G.sT}, v14")
    e(f"v_mov_b32 v{G.T2}, {LDS_FL+CL}")
    e.fence()
    e.raw(".p2align 6")
    e.label("L_O_task")
    if "serialO" in EXP:
        e(f"s_mov_b32 s{G.sT}, 4")
        flag_wait(e, G.T0, G.T2, G.sT, 0, sleep=4)
    e(f"s_add_u32 s{G.sT}, s{G.sTASK}, 1")
    flag_wait(e, G.T0, G.T2, G.sT, 0, sleep=4)
    if "avoid" in EXP:
        lab = e.newlabel("avoid")
        e.label(lab)
        e("s_sleep 4")
        e(f"ds_read_b32 v{G.T0}, v{G.T2}")
        e("s_waitcnt lgkmcnt(0)")
        e(f"v_cmp_eq_u32 vcc, s{sW}, v{G.T0}")
        e(f"s_cbranch_vccnz {lab}")
    e.label("L_O_poll")
    e(f"s_sub_u32 s{sBUD}, s{sBUD}, 1")
    e("s_cbranch_scc1 L_bail")
    e(f"buffer_load_dword v{G.T0}, v14, {sr(S_WS)}, 0 offen sc1")
    e("s_waitcnt vmcnt(0)")
    e.vm = []
    e(f"v_cmp_gt_u32 vcc, s{G.sT}, v{G.T0}")
    e("s_cbranch_vccz L_O_go")
    e("s_sleep 8")
    e("s_branch L_O_poll")
    e.label("L_O_go")
    ts(e, G.T0, G.T1, True)
    e(f"s_add_u32 s{G.sT2}, s{G.sO}, s{G.sTB}")
    e.throttle = GTHO
    for i in range(9):
        Item(loadB(i), "d", tag=("b", 0, i)).emit(e)
    e.lg = [("a", 0)] * 10
    for q in range(8):
        par = q & 1
        M = []
        lastuse = {}
        for i in range(9):
            for n, j in enumerate([j for j in range(5) if (i, j) in acc]):
                pre = None
                if n == 0:
                    def pre(e, i=i, q=q):
                        if i == 0:
                            e.wait_lg(lambda t: t == ("a", q))
                        e.wait_vm(lambda t: t == ("b", q, i))
                M.append((f"v_mfma_f32_16x16x32_bf16 {vr(acc[(i,j)])}, {vr(G.OAF+20*par+4*j)}, {vr(G.OBF+4*i)}, {vr(acc[(i,j)])}", pre))
                lastuse[i] = len(M) - 1
        QB = []
        if q < 7:
            QB.append(Item(f"s_add_u32 s{G.sT2}, s{G.sO}, s{G.sTB+q+1}", "s", -1, 3))
            QB += [Item(loadB(i), "d", lastuse[i], tag=("b", q + 1, i)) for i in range(9)]
        QA = [Item(lambda e, q=q: e.wait_vm(lambda t: t == ("w", q + 1)), "s", 0)]
        QA += [Item(x, "l", 0, tag=("a", q + 1)) for x in readsA(q + 1)]
        QA += [Item(lambda e, q=q: e.wait_lg(lambda t: t == ("a", q + 1)), "s", 18)]
        QA += dmaW(q + 3, ("w", q + 3), 18)
        schedule(e, M, [QB, QA])
    e.throttle = 0
    e(f"s_add_u32 s{G.sO}, s{G.sO}, 36864")
    e(f"s_add_u32 s{G.sWo}, s{G.sWo}, 147456")
    e(f"s_add_u32 s{G.sTASK}, s{G.sTASK}, 1")
    ts(e, G.T0, G.T1)
    e(f"s_cmp_lt_u32 s{G.sTASK}, 4")
    e.branch("s_cbranch_scc1 L_O_task")
    e("s_waitcnt vmcnt(0) lgkmcnt(0)")
    e.vm, e.lg = [], []
    e(f"v_lshlrev_b32 v{G.FLA}, 2, v0")
    e(f"v_add_u32 v{G.FLA}, {LDS_FL}, v{G.FLA}")
    e(f"v_mov_b32 v{G.BIG}, 0x7fffffff")
    g_arrive(e)
    RED, OST, R2_ = 8, 9, 10
    e(f"v_lshlrev_b32 v{RED}, 4, v0")
    e(f"v_and_b32 v{G.T0}, 15, v0")
    e(f"v_lshrrev_b32 v{G.T1}, 4, v0")
    e(f"v_mul_u32_u24 v{OST}, 2304, v{G.T0}")
    e(f"v_lshl_add_u32 v{OST}, v{G.T1}, 3, v{OST}")
    e(f"s_mul_i32 s{G.sT}, s{sB}, {144*2304}")
    e(f"s_mul_i32 s{G.sT2}, s{sBLK}, 1152")
    e(f"s_add_u32 s{G.sT}, s{G.sT}, s{G.sT2}")
    e(f"v_add_u32 v{OST}, s{G.sT}, v{OST}")
    e(f"s_mul_i32 s{G.sO}, s{G.sE}, {4*16*2304}")
    e(f"s_cmp_eq_u32 s{G.sE}, 0")
    e(f"s_cselect_b32 s{G.sWo}, {5*16*2304}, 0")
    e(f"s_lshl_b32 s{G.sCNT}, s{sJ}, 7")
    e(f"s_lshl_b32 s{G.sT3}, s{G.sP}, 5")
    e(f"v_add_u32 v{R2_}, 63488, v{RED}")
    flag_wait(e, G.FL, G.FLA, G.sF, CG, sleep=0)
    for w in range(1, 4):
        e(f"s_cmp_eq_u32 s{sW}, {w}")
        e.branch(f"s_cbranch_scc1 L_red{w}")
    NTL = len(tiles)

    def slot(src, k):
        return (src * 31 + len([x for x in range(k) if x % 4 != src])) * 1024

    for w in range(4):
        e.label(f"L_red{w}")
        e.hist = []
        e.lg = []
        e(f"v_add_u32 v{G.T0}, {w*31*1024}, v{RED}")
        for k, t in enumerate(tiles):
            if k % 4 != w:
                e(f"ds_write_b128 v{G.T0}, {vr(acc[t])} offset:{slot(w,k) - w*31*1024}")
        e("s_waitcnt lgkmcnt(0)")
        e.lg = []
        g_arrive(e)
        flag_wait(e, G.FL, G.FLA, G.sF, CG, sleep=0)
        own = [k for k in range(NTL) if k % 4 == w]
        free = [acc[tiles[k]] for k in range(NTL) if k % 4 != w]
        tmp = {}
        n = 0
        for k in own:
            for src in range(4):
                if src == w:
                    continue
                a = slot(src, k)
                r_ = free[n] if n < len(free) else G.OBF + 4 * (n - len(free))
                tmp[(k, src)] = r_
                n += 1
                if a < 63488:
                    e(f"ds_read_b128 {vr(r_)}, v{RED} offset:{a}", (k, src))
                else:
                    e(f"ds_read_b128 {vr(r_)}, v{R2_} offset:{a-63488}", (k, src))
        for k in own:
            t = tiles[k]
            for src in range(4):
                if src == w:
                    continue
                e.wait_lg(lambda x: x == (k, src))
                for q in range(4):
                    e(f"v_add_f32 v{acc[t]+q}, v{acc[t]+q}, v{tmp[(k,src)]+q}")
            e(f"v_cvt_pk_bf16_f32 v{acc[t]}, v{acc[t]}, v{acc[t]+1}")
            e(f"v_cvt_pk_bf16_f32 v{acc[t]+1}, v{acc[t]+2}, v{acc[t]+3}")
            i, j = t
            if i < 5:
                e(f"s_add_u32 s{G.sT}, s{G.sO}, {i*16*2304}")
            else:
                e(f"s_add_u32 s{G.sT}, s{G.sWo}, {(i-5)*16*2304}")
            if j < 4:
                e(f"s_add_u32 s{G.sT}, s{G.sT}, s{G.sCNT}")
                off = 32 * j
            else:
                e(f"s_add_u32 s{G.sT}, s{G.sT}, s{G.sT3}")
                off = 1024
            e(f"buffer_store_dwordx2 {vr(acc[t],2)}, v{OST}, {sr(S_OUT)}, s{G.sT} offen offset:{off}")
        ts(e, G.T0, G.T1)
        e.branch("s_branch L_bail")
    for f in ool:
        f(e)


def main():
    e = E()
    e.throttle = 0
    e.raw(f"; @launch grid=(256,1,1) block=(512,1,1) lds={LDS_TOTAL}")
    e.raw('.amdgcn_target "amdgcn-amd-amdhsa--gfx950"\n.text')
    e.raw(f".globl {NAME}_kernel\n.p2align 8\n.type {NAME}_kernel,@function\n{NAME}_kernel:")
    prologue(e, "L_end")
    e("s_barrier")
    ts_init(e)
    ts(e, 1, 2)
    e(f"s_cmp_lt_u32 s{sWAVE}, 4")
    e.branch("s_cbranch_scc1 L_A")
    gen_G(e)
    e.label("L_A")
    e.hist = []
    gen_A(e)
    e.label("L_bail")
    e("s_waitcnt vmcnt(0) lgkmcnt(0)")
    e.label("L_end")
    e("s_endpgm")
    e.raw('.section .rodata,"a"')
    e.raw(f""".p2align 6
.amdhsa_kernel {NAME}_kernel
  .amdhsa_next_free_vgpr 256
  .amdhsa_next_free_sgpr 102
  .amdhsa_accum_offset 256
  .amdhsa_group_segment_fixed_size 0
  .amdhsa_kernarg_size 104
  .amdhsa_user_sgpr_count 2
  .amdhsa_user_sgpr_kernarg_segment_ptr 1
  .amdhsa_system_sgpr_workgroup_id_x 1
.end_amdhsa_kernel""")
    sys.stdout.write(e.text())
    print(f"instructions: {e.n_ins}, max vgpr {e.maxv}", file=sys.stderr)


if __name__ == "__main__":
    main()
```

```python
import sys, math, struct, os
from emit import E, vr, sr

NAME = "concat_heads__mha_block_cached__gqa_block_cached__near_ridge"
WS_BYTES = 292618240
OWS = 0
NI = 8
NT = NI // 2
NX = 3
XST = 18432
LDS_QT1 = NI * 8192
LDS_ST = LDS_QT1 + 8192
LDS_X = LDS_ST
LDS_W = LDS_ST + NX * XST
LDS_R1 = LDS_ST
LDS_R2 = LDS_R1 + 36864
LDS_QT2 = LDS_R2 + 36864
LDS_FL = LDS_W + 32768
assert LDS_QT2 + 8192 <= LDS_FL
LDS_OST = LDS_QT1
LDS_TOTAL = LDS_FL + 1280
CA, CG, CQ, CP, CL = 0, 256, 512, 768, 1024
assert LDS_TOTAL <= 163840, LDS_TOTAL
THR = 16.0
TS = int(os.environ.get("TS", "0"))
TSOFF = 80000000
EXP = os.environ.get("EXP", "")
KVF = os.environ.get("KVF", "nt")
OOB = 0x40000000
WSW = 42000000 // 256 * 256
ASLP = int(os.environ.get("ASLP", "0"))
GSLP = int(os.environ.get("GSLP", "0"))
KVW = int(os.environ.get("KVW", "2"))
TRIALS = int(os.environ.get("TRIALS", "400"))
KEARLY = int(os.environ.get("KEARLY", "2"))
KDPOS = int(os.environ.get("KDPOS", "3"))
KVAT = int(os.environ.get("KVAT", "16"))
GTHQ = int(os.environ.get("GTHQ", "0"))
GTHO = int(os.environ.get("GTHO", "4"))
FLG = 40000000 // 256 * 256
POLL = os.environ.get("POLL", "sload")
QSTEP = int(os.environ.get("QSTEP", "4"))


def f32(x):
    return "0x%08x" % struct.unpack("<I", struct.pack("<f", x))[0]


S_X, S_K, S_V, S_WQ, S_WO, S_OUT, S_DBG, S_WS = 32, 36, 40, 44, 48, 52, 56, 60
sWAVE, sW, sPAIR, sB, sJ, sBLK = 64, 65, 66, 67, 68, 69
sRET = 88
sBUD = 90
sTS = 91


def prologue(e, endlabel):
    e("s_cmp_ge_u32 s2, 256")
    e(f"s_cbranch_scc1 {endlabel}")
    e("s_load_dwordx16 s[4:19], s[0:1], 0")
    e("s_load_dwordx8 s[20:27], s[0:1], 64")
    e("s_load_dwordx2 s[28:29], s[0:1], 96")
    e("v_lshrrev_b32 v1, 6, v0")
    e(f"v_readfirstlane_b32 s{sWAVE}, v1")
    e("v_and_b32 v0, 63, v0")
    e(f"v_lshlrev_b32 v1, 2, v0")
    e(f"v_add_u32 v1, {LDS_FL}, v1")
    e("v_mov_b32 v2, 0")
    for k in range(5):
        e(f"ds_write_b32 v1, v2 offset:{256*k}")
    e(f"s_and_b32 s{sW}, s{sWAVE}, 3")
    e("s_and_b32 s3, s2, 7")
    e("s_lshl_b32 s3, s3, 2")
    e(f"s_lshr_b32 s{sPAIR}, s2, 6")
    e(f"s_add_u32 s{sPAIR}, s{sPAIR}, s3")
    e(f"s_lshr_b32 s{sJ}, s2, 3")
    e(f"s_and_b32 s{sJ}, s{sJ}, 7")
    e(f"s_and_b32 s{sB}, s{sPAIR}, 15")
    e(f"s_lshr_b32 s{sBLK}, s{sPAIR}, 4")
    e(f"s_mov_b32 s{sBUD}, 0x40000")
    for dst, nbytes in ((S_X, 16 * 144 * 576 * 2), (S_K, 1 << 26), (S_V, 1 << 26), (S_WQ, 576 * 4096 * 2),
                        (S_WO, 576 * 4096 * 2), (S_OUT, 16 * 144 * 1152 * 2), (S_DBG, 256), (S_WS, WS_BYTES)):
        e(f"s_mov_b32 s{dst+2}, {nbytes}")
        e(f"s_mov_b32 s{dst+3}, 0x20000")
    e("s_waitcnt lgkmcnt(0)")
    e.lg = []
    e(f"s_cmp_eq_u32 s{sBLK}, 0")
    for dst, a, b in ((S_X, 4, 14), (S_K, 6, 16), (S_V, 8, 18), (S_WQ, 10, 20), (S_WO, 12, 22)):
        e(f"s_cselect_b32 s{dst}, s{a}, s{b}")
        e(f"s_cselect_b32 s{dst+1}, s{a+1}, s{b+1}")
    for dst, src in ((S_OUT, 24), (S_DBG, 26), (S_WS, 28)):
        e(f"s_mov_b32 s{dst}, s{src}")
        e(f"s_and_b32 s{dst+1}, s{src+1}, 0xffff")
    for dst in (S_X, S_K, S_V, S_WQ, S_WO):
        e(f"s_and_b32 s{dst+1}, s{dst+1}, 0xffff")


def ts_init(e):
    if not TS:
        return
    e(f"s_lshl_b32 s{sTS}, s2, 3")
    e(f"s_add_u32 s{sTS}, s{sTS}, s{sWAVE}")
    e(f"s_lshl_b32 s{sTS}, s{sTS}, 11")
    e(f"s_add_u32 s{sTS}, s{sTS}, {TSOFF}")
    e("s_mov_b32 s14, 0")
    e("s_mov_b32 s15, 0")


def ts(e, va, vd, budget=False):
    if TS not in (1, 3, 4):
        return
    e("s_memtime s[4:5]" if "rt" not in EXP else "s_memrealtime s[4:5]")
    e("s_waitcnt lgkmcnt(0)")
    e(f"v_mov_b32 v{va}, 0")
    e(f"v_mov_b32 v{vd}, s4")
    e(f"buffer_store_dword v{vd}, v{va}, {sr(S_WS)}, s{sTS} offen")
    e.vm.pop()
    e(f"s_add_u32 s{sTS}, s{sTS}, 4")
    if budget:
        for rg in ([sBUD] if TS == 1 else [14, 15]):
            e(f"v_mov_b32 v{vd}, s{rg}")
            if TS == 4:
                e(f"v_or_b32 v{vd}, 0x80000000, v{vd}")
            e(f"buffer_store_dword v{vd}, v{va}, {sr(S_WS)}, s{sTS} offen")
            e.vm.pop()
            e(f"s_add_u32 s{sTS}, s{sTS}, 4")


def flag_check(e, ool, vfl, vaddr, sF, off, tag="fl"):
    e.wait_lg(lambda t: t == tag)
    e(f"v_cmp_gt_u32 vcc, s{sF}, v{vfl}")
    lab = e.newlabel("spin")
    back = e.newlabel("spinb")
    e.branch(f"s_cbranch_vccnz {lab}", fence=False)
    e.label(back)

    def f(e):
        e.label(lab)
        e.hist = []
        e(f"ds_read_b32 v{vfl}, v{vaddr} offset:{off}")
        e(f"s_sub_u32 s{sBUD}, s{sBUD}, 1")
        e("s_cbranch_scc1 L_bail")
        e("s_waitcnt lgkmcnt(0)")
        e(f"v_cmp_gt_u32 vcc, s{sF}, v{vfl}")
        e.branch(f"s_cbranch_vccz {back}", fence=False)
        e.branch(f"s_branch {lab}", fence=False)
    ool.append(f)


def flag_wait(e, vfl, vaddr, sF, off, sleep=2):
    lab = e.newlabel("fw")
    e.label(lab)
    if sleep:
        e(f"s_sleep {sleep}")
    e(f"s_sub_u32 s{sBUD}, s{sBUD}, 1")
    e("s_cbranch_scc1 L_bail")
    e(f"ds_read_b32 v{vfl}, v{vaddr} offset:{off}")
    e("s_waitcnt lgkmcnt(0)")
    e.lg = []
    e(f"v_cmp_gt_u32 vcc, s{sF}, v{vfl}")
    e.branch(f"s_cbranch_vccnz {lab}", fence=False)


COST = dict(s=1, v=1, t=2, l=2, d=3, w=3, b=3)


class Item:
    def __init__(self, do, kind, after=-1, before=10**9, tag=None, cost=None, needs=None, delay=0):
        self.do, self.kind, self.after, self.before, self.tag = do, kind, after, before, tag
        self.cost = cost if cost is not None else COST[kind]
        self.needs, self.delay = needs, delay
        self.at = None

    def ready(self, k):
        if self.after > k:
            return False
        if self.needs is not None:
            return self.needs.at is not None and self.needs.at + self.delay <= k
        return True

    def emit(self, e, k=10**6):
        assert self.needs is None or self.needs.at is not None, ("unmet dependency", self.do)
        self.at = k
        if self.kind == "d" and e.throttle and len(e.vm) >= e.throttle:
            n = e.throttle - 1
            e(f"s_waitcnt vmcnt({n})")
            e.vm = e.vm[len(e.vm) - n:] if n else []
        acc = None
        if TS == 4 and getattr(e, "inA", False) and not callable(self.do):
            if self.kind == "d":
                acc = 15
            elif "vmcnt" in self.do:
                acc = 14
        if acc:
            e("s_memtime s[16:17]")
            e(self.do, self.tag)
            e("s_memtime s[18:19]")
            e("s_waitcnt lgkmcnt(0)")
            e("s_sub_u32 s18, s18, s16")
            e(f"s_add_u32 s{acc}, s{acc}, s18")
        elif callable(self.do):
            self.do(e)
        elif self.kind == "d" and getattr(e, "nodma", "") and any(x in self.do for x in ([e.nodma] if isinstance(e.nodma, str) else e.nodma)):
            e("s_nop 0")
            e.vm.append(self.tag)
        else:
            e(self.do, self.tag)


ASLOTS = int(os.environ.get('ASLOTS', '4'))
import random


def estimate(lines):
    gaps = []
    cur = 0
    prev = None
    for l in lines:
        l = l.strip()
        if not l or l.endswith(":") or l.startswith("."):
            continue
        mn = l.split()[0]
        if "mfma" in mn:
            gaps.append(cur); cur = 1; prev = "m"
            continue
        if mn.startswith("v_"):
            c = 2 if mn in ("v_exp_f32", "v_rcp_f32") else 1
            if prev == "m":
                c += 1
            prev = "v"
        elif mn.startswith("ds_read"):
            c = 2 + (1 if prev == "v" else 0); prev = "l"
        elif mn.startswith("ds_"):
            c = 3 + (2 if prev == "v" else 0); prev = "l"
        elif mn.startswith("buffer"):
            c = 3 + (1 if prev == "v" else 0); prev = "l"
        elif mn.startswith("s_cbranch") or mn == "s_branch":
            c = 3; prev = "s"
        elif mn == "s_nop":
            c = int(l.split()[1]) + 1; prev = "s"
        else:
            c = 1; prev = "s"
        cur += c
    gaps.append(cur)
    return 4 * (gaps[0] + sum(max(4, g) for g in gaps[1:]))


def best_seed(fn, lg0, trials):
    best = (10**9, None)
    for seed in range(trials):
        t = E()
        t.throttle = 0
        t.lg = list(lg0)
        fn(t, seed)
        c = estimate(t.lines)
        if c < best[0]:
            best = (c, seed)
    return best


def schedule(e, mfmas, queues, NSL0=3, spread=False, seed=None):
    rng = random.Random(seed) if seed is not None else None
    allq = queues
    if rng:
        pw = rng.choice([0.0, 0.1, 0.2, 0.35])
        nsl_choices = rng.choice([[3, 4], [3, 4, 5], [4], [3, 3, 4], [4, 5], [3, 4, 4, 5, 6]])

    def force(it, k):
        if it.at is not None:
            return
        for q in queues:
            if it in q:
                while True:
                    x = q[0]
                    if x.needs is not None:
                        force(x.needs, k)
                    q.pop(0)
                    x.emit(e, k)
                    if x is it:
                        return

    for k, (txt, pre) in enumerate(mfmas):
        for q in queues:
            for it in [x for x in q if x.before <= k]:
                force(it, k - 1)
        if pre:
            pre(e)
        e(txt)
        slot = 0
        NSL = NSL0
        queues = allq
        if rng:
            NSL = rng.choice(nsl_choices)
            if rng.random() < pw:
                queues = list(allq)
                rng.shuffle(queues)
            spread = rng.random() < 0.7
        valu_seen = False
        progress = True
        while slot < NSL and progress:
            progress = False
            cand = None
            anyv = any(q and q[0].ready(k) and q[0].kind in "vt" for q in queues)
            for q in queues:
                if q and q[0].ready(k) and q[0].kind in "ldwb" and not valu_seen and (slot == 0 or (slot + q[0].cost <= NSL and not (spread and anyv))):
                    cand = q
                    break
            if cand is None and slot == 0:
                for q in queues:
                    if q and q[0].ready(k) and q[0].kind == "s":
                        cand = q
                        break
                if cand is None:
                    slot = 1
            if cand is None:
                for q in queues:
                    if q and q[0].ready(k) and q[0].kind in "vt" and (slot + q[0].cost <= NSL or slot <= 1):
                        cand = q
                        break
            if cand is None:
                for q in queues:
                    if q and q[0].ready(k) and q[0].kind == "s":
                        cand = q
                        break
            if cand is not None:
                it = cand.pop(0)
                it.emit(e, k)
                slot += it.cost
                if it.kind in "vt":
                    valu_seen = True
                progress = True
    for q in queues:
        while q:
            force(q[0], len(mfmas))


class A:
    DMA, KR0, KR1, VR0, VR1, VR2, VR3, FLA, FL, MX, T2 = range(1, 12)
    T0, T1 = MX, FL
    ONE = 12
    L = 16
    C = 28
    S = 40
    FP = 64
    Q = 112
    O = 160
    sF, sMK, sWR, sG, sTHR, sFLOOR, cK1, cK2, cV1, cV2, sSP, sGEN, sT2, sOOFF, sLEFT, sT, sDL, sPH = range(70, 88)


NSTEADY = 2 * (NI - 3)
NOST = 8


def a_dma_items(kind, after):
    it = []
    if kind == "k":
        it.append(Item(f"s_add_u32 m0, s{A.sWR}, s{A.cK1}", "s", after))
        it.append(Item(f"buffer_load_dwordx4 v{A.DMA}, {sr(S_K)}, s{A.sG} offen {KVF} lds", "d", after))
        it.append(Item(f"s_add_u32 m0, s{A.sWR}, s{A.cK2}", "s", after))
        it.append(Item(f"buffer_load_dwordx4 v{A.DMA}, {sr(S_K)}, s{A.sG} offen offset:128 {KVF} lds", "d", after))
    else:
        it.append(Item(f"s_add_u32 m0, s{A.sWR}, s{A.cV1}", "s", after))
        it.append(Item(f"buffer_load_dwordx4 v{A.DMA}, {sr(S_V)}, s{A.sG} offen {KVF} lds", "d", after))
        it.append(Item(f"s_add_u32 m0, s{A.sWR}, s{A.cV2}", "s", after))
        it.append(Item(f"buffer_load_dwordx4 v{A.DMA}, {sr(S_V)}, s{A.sG} offen offset:128 {KVF} lds", "d", after))
        it.append(Item(f"s_add_u32 s{A.sG}, s{A.sG}, 8192", "s", after))
        it.append(Item(f"s_sub_u32 s{A.sLEFT}, s{A.sLEFT}, 1\ns_cselect_b32 s{A.sG}, {OOB}, s{A.sG}", "s", after))
        it.append(Item(f"s_add_u32 s{A.sWR}, s{A.sWR}, 16384", "s", after))
        it.append(Item(f"s_and_b32 s{A.sWR}, s{A.sWR}, {NT*16384-1}", "s", after))
        it.append(Item(f"s_cmp_eq_u32 s{A.sWR}, {(NT-1)*16384}\ns_cselect_b32 s{A.sDL}, s{A.sPH}, 16384", "s", after, cost=2))
    return it


def a_kread(dst, i):
    u, s_ = i >> 2, i & 3
    return f"ds_read_b128 {vr(dst)}, v{A.KR1 if s_&1 else A.KR0} offset:{(s_>>1)*4096 + u*2048}"


def a_qread(e, sbase, d01, d8):
    e(f"v_lshlrev_b32 v{A.T2}, 4, v0")
    e(f"v_add_u32 v{A.T2}, s{sbase}, v{A.T2}")
    for s_ in range(4):
        e(f"ds_read_b128 {vr(d8+4*s_)}, v{A.T2} offset:{32768+1024*s_}")
    e(f"s_lshl_b32 s{A.sT2}, s{sW}, 13")
    e(f"v_add_u32 v{A.T2}, s{A.sT2}, v{A.T2}")
    for i in range(8):
        e(f"ds_read_b128 {vr(d01+4*i)}, v{A.T2} offset:{1024*i}")


def a_flagstore(e, val):
    e(f"s_lshl_b32 s{A.sT}, s{sPAIR}, 3")
    e(f"s_add_u32 s{A.sT}, s{A.sT}, s{sJ}")
    e(f"s_lshl_b32 s{A.sT}, s{A.sT}, 8")
    e(f"s_add_u32 s{A.sT}, s{A.sT}, {FLG}")
    e(f"v_mov_b32 v{A.T0}, s{A.sT}")
    e(f"v_mov_b32 v{A.T1}, {val}")
    e("s_mov_b64 exec, 1")
    e(f"buffer_store_dword v{A.T1}, v{A.T0}, {sr(S_WS)}, 0 offen sc1")
    e.vm.pop()
    e("s_mov_b64 exec, -1")


def a_signal(e):
    if "wb" not in EXP:
        a_flagstore(e, f"s{A.sGEN}")
    e(f"ds_inc_u32 v{A.FLA}, v{A.ONE} offset:{CL}")


def a_flaginit(e):
    X = A.FP
    e(f"s_lshl_b32 s{A.sT2}, s{sB}, 3")
    e(f"s_add_u32 s{A.sT2}, s{A.sT2}, s{sJ}")
    e(f"s_mul_i32 s{A.sT}, s{A.sT2}, {32*1152}")
    e(f"v_lshrrev_b32 v{A.T0}, 3, v0")
    e(f"v_and_b32 v{A.T1}, 7, v0")
    e(f"v_mul_u32_u24 v{A.T2}, 1152, v{A.T0}")
    e(f"v_lshl_add_u32 v{A.T2}, v{A.T1}, 4, v{A.T2}")
    for rg in range(4):
        e(f"buffer_load_dwordx4 {vr(X+4*rg)}, v{A.T2}, {sr(S_WO)}, s{A.sT} offen offset:1024", "pk")
        e(f"s_add_u32 s{A.sT}, s{A.sT}, {8*1152}")
    e(f"v_lshrrev_b32 v{A.T2}, 1, v{A.T1}")
    e(f"v_lshlrev_b32 v{A.T2}, 17, v{A.T2}")
    e(f"v_lshl_add_u32 v{A.T2}, v{A.T0}, 5, v{A.T2}")
    e(f"v_and_b32 v{A.T1}, 1, v{A.T1}")
    e(f"v_lshl_add_u32 v{A.T2}, v{A.T1}, 4, v{A.T2}")
    e(f"s_lshl_b32 s{A.sT}, s{A.sT2}, 10")
    e(f"s_lshl_b32 s{A.sT2}, s{sBLK}, 19")
    e(f"s_add_u32 s{A.sT}, s{A.sT}, s{A.sT2}")
    e(f"s_add_u32 s{A.sT}, s{A.sT}, {WSW}")
    e("s_waitcnt vmcnt(0)")
    for rg in range(4):
        e(f"buffer_store_dwordx4 {vr(X+4*rg)}, v{A.T2}, {sr(S_WS)}, s{A.sT} offen offset:{256*rg} sc1", "pk")
    a_flagstore(e, "0")
    e("s_waitcnt vmcnt(0)")
    e(f"s_lshl_b32 s{A.sT}, s{sBLK}, 7")
    e(f"v_mov_b32 v{A.T0}, s{A.sT}")
    e(f"v_mov_b32 v{A.T1}, 1")
    e("s_mov_b64 exec, 1")
    e(f"buffer_atomic_add v{A.T1}, v{A.T0}, {sr(S_DBG)}, 0 offen sc1")
    e("s_mov_b64 exec, -1")
    e.vm = []


def a_qstep_work(e, R, ool):
    skip = e.newlabel("qskip")
    nosig = e.newlabel("nosig")
    e(f"s_cmp_eq_u32 s{A.sGEN}, 0")
    e(f"s_cbranch_scc1 {skip}")
    e(f"s_cmp_lg_u32 s{sW}, 0")
    e(f"s_cbranch_scc1 {nosig}")
    a_signal(e)
    e.label(nosig)
    e(f"s_cmp_eq_u32 s{A.sGEN}, 3")
    e(f"s_cbranch_scc1 {skip}")
    e(f"s_mov_b32 s{A.sT}, 8")
    flag_wait(e, A.FL, A.FLA, A.sT, CQ, sleep=0)
    if R == 2:
        e(f"s_cmp_eq_u32 s{A.sGEN}, 1")
        e(f"s_mov_b32 s{A.sT}, {LDS_R2}")
        e(f"s_cselect_b32 s{A.sT}, {LDS_R1}, s{A.sT}")
        a_qread(e, A.sT, A.O + 64, A.Q + 32)
        e("s_waitcnt lgkmcnt(0)")
    e(f"ds_inc_u32 v{A.FLA}, v{A.ONE} offset:{CP}")
    e.label(skip)


sCR, sCF, sCS = 92, 98, 100


def a_spin(e):
    flag_wait(e, A.FL, A.FLA, A.sF, CA, sleep=ASLP)


def a_step(e, R, p, ool, seed=None):
    nextp = (p + 1) % 3
    Gr = lambda k: A.FP + 16 * (k % 3)
    K = [Gr(p) + 4 * i for i in range(4)] + [Gr(p + 1) + 4 * i for i in range(4)]
    V = [Gr(p + 2) + 4 * i for i in range(4)] + [Gr(p) + 4 * i for i in range(4)]
    Kn = [Gr(nextp) + 4 * i for i in range(4)] + [Gr(nextp + 1) + 4 * i for i in range(4)]
    base = 8 * R
    lastqk = 8 * (R - 1)
    lastpv = base + 9 * (R - 1)
    end = base + 9 * R
    wl = lambda tag: (lambda e: e.wait_lg(lambda t: t == tag))
    M = []
    for r in range(R):
        for idx in range(8):
            u, s = idx >> 2, idx & 3
            d = A.S + 8 * r + 4 * u
            c = vr(A.C + 4 * r) if s == 0 else vr(d)
            pre = None
            if r == 0:
                pre = wl(("k", 3)) if idx == 0 else (wl(("k", idx + 1)) if idx in (4, 6) else None)
            M.append((f"v_mfma_f32_16x16x32_bf16 {vr(d)}, {vr(K[idx])}, {vr(A.Q+16*r+4*s)}, {c}", pre))
    for r in range(R):
        for T in range(8):
            o = A.O + 32 * r + 4 * T
            pre = None
            if r == 0:
                pre = wl(("v", 3)) if T == 0 else (wl(("v", T + 1)) if T in (4, 6) else None)
            M.append((f"v_mfma_f32_16x16x32_bf16 {vr(o)}, {vr(V[T])}, {vr(A.S+8*r)}, {vr(o)}", pre))
        M.append((f"v_mfma_f32_16x16x32_bf16 {vr(A.L+4*r)}, {vr(A.ONE)}, {vr(A.S+8*r)}, {vr(A.L+4*r)}", None))

    def flagcmp(e):
        e.wait_lg(lambda t: t == "fl")
        e(f"v_cmp_gt_u32 s[{sCF}:{sCF+1}], s{A.sF}, v{A.FL}")

    QV = []
    QC = []
    QZ = []
    fc0 = Item(flagcmp, "v", base - 1)
    cpc = None
    for r in range(R):
        b = A.S + 8 * r
        e1 = 8 * r + 7 + 2
        need = base + 9 * r
        q = []
        mx = Item(f"v_max3_f32 v{A.MX}, v{b}, v{b+1}, v{b+2}\nv_max3_f32 v{A.MX}, v{A.MX}, v{b+3}, v{b+4}\n"
                  f"v_max3_f32 v{A.MX}, v{A.MX}, v{b+5}, v{b+6}\nv_max_f32 v{A.MX}, v{A.MX}, v{b+7}\n"
                  f"v_cmp_lt_f32 s[{sCR+2*r}:{sCR+2*r+1}], s{A.sTHR}, v{A.MX}", "v", e1, cost=5)
        if r == R - 1:
            QC.append(fc0)
        QC.append(mx)

        def chk(e, r=r):
            lab = e.newlabel("rare")
            back = e.newlabel("rareb")
            if r == R - 1:
                e(f"s_or_b64 s[{sCF}:{sCF+1}], s[{sCF}:{sCF+1}], s[{sCR+2*r}:{sCR+2*r+1}]")
            else:
                e(f"s_cmp_lg_u64 s[{sCR+2*r}:{sCR+2*r+1}], 0")
            e.branch(f"s_cbranch_scc1 {lab}", fence=False)
            e.label(back)

            def f(e):
                e.label(lab)
                e.hist = []
                if r == R - 1:
                    a_spin(e)
                    e(f"s_cmp_eq_u64 s[{sCR+2*r}:{sCR+2*r+1}], 0")
                    e(f"s_cbranch_scc1 {back}")
                e(f"s_call_b64 s[{sRET}:{sRET+1}], L_rare{r}")
                e(f"s_branch {back}")
            ool.append(f)
        ck = Item(chk, "b", e1, needs=mx, delay=2, cost=4)
        QC.append(ck)
        if r == R - 1:
            cpc = ck
        for i in range(8):
            q.append(Item(f"v_exp_f32 v{b+i}, v{b+i}", "t", e1, needs=ck if i == 0 else None))
            if i in (2, 4, 6):
                k = i // 2 - 1
                q.append(Item(f"v_cvt_pk_bf16_f32 v{b+k}, v{b+2*k}, v{b+2*k+1}", "v", e1))
        q.append(Item(f"v_cvt_pk_bf16_f32 v{b+3}, v{b+6}, v{b+7}", "v", e1, need - 1))
        QV.append(q)
    QL = []

    def vread(T, u, after):
        QL.append(Item(f"ds_read_b64_tr_b16 {vr(V[T]+2*u,2)}, v{A.VR0+(T&3)} offset:{8192+(T>>2)*4096+u*2048}", "l", after, base, ("v", T)))

    for T in range(4):
        vread(T, 0, T)
        vread(T, 1, T)
    for T in range(4, 8):
        vread(T, 0, lastqk + T - 4)
        vread(T, 1, lastqk + T - 4)
    fl0 = Item(f"ds_read_b32 v{A.FL}, v{A.FLA} offset:{CA}", "l", base - 4, base - 1, tag="fl")
    QL.append(fl0)
    fc0.needs, fc0.delay = fl0, 2
    rr = random.Random(seed)
    KEARLY = rr.choice([0, 1, 2, 3, 4, 6, 8])
    KDPOS = rr.choice([-6, -3, 0, 2, 4])
    KA = lastpv - KEARLY
    for i in range(4):
        QL.append(Item(a_kread(Kn[i], i), "l", KA + i, tag=("kn", i), needs=cpc, delay=1))
    for i in range(4, 8):
        QL.append(Item(a_kread(Kn[i], i), "l", lastpv + V.index(Kn[i]), tag=("kn", i)))
    fl1 = Item(f"ds_read_b32 v{A.FL}, v{A.FLA} offset:{CA}", "l", end - 6, end - 3, tag="fl")
    QL.append(fl1)
    QS = a_dma_items("v", 0)
    QS.append(Item(f"s_waitcnt vmcnt({NSTEADY})", "s", 7))
    QS.append(Item(f"ds_inc_u32 v{A.FLA}, v{A.ONE} offset:{CA}", "w", 7, base - 5, tag="flw"))
    QS.append(Item(f"s_add_u32 s{A.sF}, s{A.sF}, 4", "s", 7))
    QS.append(Item(f"v_add_u32 v{A.KR0}, s{A.sDL}, v{A.KR0}", "v", 3))
    QS.append(Item(f"v_add_u32 v{A.KR1}, s{A.sDL}, v{A.KR1}", "v", 3, base - 1))
    QS.append(Item(f"s_waitcnt vmcnt({NSTEADY-2})", "s", base + 7, needs=cpc))
    QS.append(Item(f"ds_inc_u32 v{A.FLA}, v{A.ONE} offset:{CA}", "w", base + 7, end - 7, tag="flw"))
    QS.append(Item(f"s_add_u32 s{A.sF}, s{A.sF}, 4", "s", base + 7))
    QS += a_dma_items("k", lastpv + KDPOS)
    for k in range(4):
        QZ.append(Item(f"v_add_u32 v{A.VR0+k}, s{A.sDL}, v{A.VR0+k}", "v", base))
    QS.append(Item(f"s_lshr_b32 s{A.sMK}, s{A.sMK}, 1", "s", base + 8))
    QS.append(Item(f"s_and_b32 s{sCS}, s{A.sMK}, 1", "s", base + 8))
    QS.append(Item(flagcmp, "v", end - 3, needs=fl1, delay=2))
    schedule(e, M, [QC, QL, QS] + QV + [QZ], ASLOTS, spread=True, seed=seed)
    lab = e.newlabel("cpe")
    back = e.newlabel("cpeb")
    e(f"s_or_b64 s[{sCF}:{sCF+1}], s[{sCF}:{sCF+1}], s[{sCS}:{sCS+1}]")
    e.branch(f"s_cbranch_scc1 {lab}", fence=False)
    e.label(back)

    def f(e):
        e.label(lab, full_fence=True)
        a_spin(e)
        e(f"s_cmp_eq_u32 s{sCS}, 0")
        e(f"s_cbranch_scc1 {back}")
        e(f"s_cmp_eq_u32 s{A.sMK}, 1")
        e(f"s_cbranch_scc1 L_A{R}_epi")
        e(f"s_mov_b32 s{A.sTHR}, {f32(THR)}")
        e(f"s_mov_b32 s{A.sFLOOR}, 0")
        e(f"s_cmp_lg_u32 s{A.sMK}, {(1 << (16 - QSTEP)) | 1}")
        e(f"s_cbranch_scc1 {back}")
        e(f"s_call_b64 s[{sRET}:{sRET+1}], L_qwork{R}")
        e(f"s_branch {back}")
    ool.append(f)
    e.lg = [("k", t[1]) if isinstance(t, tuple) and t[0] == "kn" else t for t in e.lg]


def a_rare(e, r):
    e.label(f"L_rare{r}", full_fence=True)
    b = A.S + 8 * r
    e("s_waitcnt lgkmcnt(0)")
    e(f"v_max3_f32 v{A.T0}, v{b}, v{b+1}, v{b+2}")
    e(f"v_max3_f32 v{A.T0}, v{A.T0}, v{b+3}, v{b+4}")
    e(f"v_max3_f32 v{A.T0}, v{A.T0}, v{b+5}, v{b+6}")
    e(f"v_max_f32 v{A.T0}, v{A.T0}, v{b+7}")
    e(f"v_mov_b32 v{A.T1}, v{A.T0}")
    e(f"v_permlane32_swap_b32 v{A.T0}, v{A.T1}")
    e(f"v_max_f32 v{A.T0}, v{A.T0}, v{A.T1}")
    e(f"v_mov_b32 v{A.T1}, v{A.T0}")
    e(f"v_permlane16_swap_b32 v{A.T0}, v{A.T1}")
    e(f"v_max_f32 v{A.T0}, v{A.T0}, v{A.T1}")
    e(f"v_max_f32 v{A.T0}, s{A.sFLOOR}, v{A.T0}")
    for i in range(8):
        e(f"v_sub_f32 v{b+i}, v{b+i}, v{A.T0}")
    for i in range(4):
        e(f"v_sub_f32 v{A.C+4*r+i}, v{A.C+4*r+i}, v{A.T0}")
    skip = e.newlabel("rfirst")
    e(f"s_cmp_lg_u32 s{A.sFLOOR}, 0")
    e(f"s_cbranch_scc1 {skip}")
    e(f"v_exp_f32 v{A.T1}, -v{A.T0}")
    for i in range(4):
        e(f"v_mul_f32 v{A.L+4*r+i}, v{A.L+4*r+i}, v{A.T1}")
    for i in range(32):
        e(f"v_mul_f32 v{A.O+32*r+i}, v{A.O+32*r+i}, v{A.T1}")
    e.label(skip)
    e(f"ds_read_b32 v{A.FL}, v{A.FLA} offset:{CA}")
    e("s_waitcnt lgkmcnt(0)")
    e.fence()
    e("s_nop 1")
    e(f"s_setpc_b64 s[{sRET}:{sRET+1}]")


def a_reset(e):
    for i in range(96):
        e(f"v_mov_b32 v{A.O+i}, 0")
    for i in range(24):
        e(f"v_mov_b32 v{A.L+i}, 0")
    e(f"s_mov_b32 s{A.sTHR}, 0xff800000")
    e(f"s_mov_b32 s{A.sFLOOR}, 0xff800000")
    e(f"s_mov_b32 s{A.sMK}, {(1 << 16) | (1 << QSTEP) | 2}")


def a_epilogue(e, R):
    if R == 3:
        e(f"s_cmp_eq_u32 s{A.sGEN}, 0")
        e(f"s_mov_b32 s{A.sT}, {LDS_QT2}")
        e(f"s_cselect_b32 s{A.sT}, {LDS_QT1}, s{A.sT}")
        e(f"s_cmp_eq_u32 s{A.sGEN}, 2")
        e(f"s_cselect_b32 s{A.sT}, {LDS_R2+16384}, s{A.sT}")
        e(f"v_lshlrev_b32 v{A.T2}, 4, v0")
        e(f"v_add_u32 v{A.T2}, s{A.sT}, v{A.T2}")
        for i in range(8):
            e(f"ds_read_b128 {vr(A.Q+4*i)}, v{A.T2} offset:{1024*i}", "qn")
    e(f"v_lshlrev_b32 v{A.T2}, 4, v0")
    for r in range(R):
        e(f"v_rcp_f32 v{A.T0}, v{A.L+4*r}")
        if r < 2:
            e(f"s_lshl_b32 s{A.sT}, s{sW}, 11")
            e(f"s_add_u32 s{A.sT}, s{A.sT}, s{A.sOOFF}")
            if r == 1:
                e(f"s_add_u32 s{A.sT}, s{A.sT}, 1024")
        else:
            e(f"s_add_u32 s{A.sT}, s{A.sOOFF}, 8192")
        for s in range(4):
            o = A.O + 32 * r + 8 * s
            for i in range(8):
                e(f"v_mul_f32 v{o+i}, v{o+i}, v{A.T0}")
            for i in range(4):
                e(f"v_cvt_pk_bf16_f32 v{o+i}, v{o+2*i}, v{o+2*i+1}")
            e(f"buffer_store_dwordx4 {vr(o)}, v{A.T2}, {sr(S_WS)}, s{A.sT} offen {'' if 'wb' in EXP else 'sc1'}", "ost")
            if s < 3:
                e(f"s_add_u32 s{A.sT}, s{A.sT}, 9216")
    e(f"s_add_u32 s{A.sOOFF}, s{A.sOOFF}, 36864")


def gen_A(e):
    ool = []
    if "noprio" not in EXP:
        e("s_setprio 2")
    e.raw("    s_getpc_b64 s[4:5]")
    e.raw("L_pc0:")
    e.raw(f"    s_sub_u32 s4, s4, L_pc0-{NAME}_kernel")
    e.raw(f"    s_subb_u32 s5, s5, 0")
    e(f"v_lshlrev_b32 v{A.T2}, 7, v0")
    e(f"s_lshl_b32 s{A.sT}, s{sW}, 13")
    e(f"v_add_u32 v{A.T2}, s{A.sT}, v{A.T2}")
    e.raw(f"    v_min_u32 v{A.T2}, L_end-{NAME}_kernel, v{A.T2}")
    e.raw(f"    global_load_dword v{A.S}, v{A.T2}, s[4:5]")
    e(f"v_lshrrev_b32 v{A.T1}, 4, v0")
    e(f"v_lshlrev_b32 v{A.T2}, 1, v{A.T1}")
    e(f"v_and_b32 v{A.T0}, 7, v0")
    e(f"v_xor_b32 v{A.T0}, v{A.T0}, v{A.T2}")
    e(f"v_lshrrev_b32 v{A.T2}, 3, v0")
    e(f"v_lshlrev_b32 v{A.DMA}, 8, v{A.T2}")
    e(f"v_lshl_add_u32 v{A.DMA}, v{A.T0}, 4, v{A.DMA}")
    e(f"v_and_b32 v{A.T0}, 15, v0")
    e(f"v_and_b32 v{A.T2}, 6, v0")
    e(f"v_xor_b32 v{A.T2}, v{A.T2}, v{A.T1}")
    e(f"v_lshlrev_b32 v{A.KR0}, 7, v{A.T0}")
    e(f"v_lshl_add_u32 v{A.KR0}, v{A.T2}, 4, v{A.KR0}")
    e(f"v_xor_b32 v{A.KR1}, 64, v{A.KR0}")
    e(f"v_lshrrev_b32 v{A.T0}, 2, v0")
    e(f"v_lshlrev_b32 v{A.VR0}, 7, v{A.T0}")
    e(f"v_bfe_u32 v{A.T2}, v0, 3, 2")
    e(f"v_lshl_add_u32 v{A.VR0}, v{A.T2}, 5, v{A.VR0}")
    e(f"v_and_b32 v{A.T2}, 3, v0")
    e(f"v_lshl_add_u32 v{A.VR0}, v{A.T2}, 3, v{A.VR0}")
    for k in range(1, 4):
        e(f"v_xor_b32 v{A.VR0+k}, {32*k}, v{A.VR0}")
    e(f"v_lshlrev_b32 v{A.FLA}, 2, v0")
    e(f"v_add_u32 v{A.FLA}, {LDS_FL}, v{A.FLA}")
    for k in range(4):
        e(f"v_mov_b32 v{A.ONE+k}, 0x3f803f80")
    e(f"s_lshl_b32 s{A.cK1}, s{sW}, 10")
    e(f"s_add_u32 s{A.cK2}, s{A.cK1}, {4096-128}")
    e(f"s_add_u32 s{A.cV1}, s{A.cK1}, 8192")
    e(f"s_add_u32 s{A.cV2}, s{A.cK2}, 8192")
    e(f"s_lshl_b32 s{A.sG}, s{sB}, 3")
    e(f"s_add_u32 s{A.sG}, s{A.sG}, s{sJ}")
    e(f"s_lshl_b32 s{A.sG}, s{A.sG}, 19")
    e(f"s_lshl_b32 s{A.sT}, s{sW}, 11")
    e(f"s_add_u32 s{A.sG}, s{A.sG}, s{A.sT}")
    e(f"s_mov_b32 s{A.sPH}, {(-(NT-1)*16384) & 0xffffffff}")
    e(f"s_lshl_b32 s{A.sT}, s{sPAIR}, 3")
    e(f"s_add_u32 s{A.sT}, s{A.sT}, s{sJ}")
    e(f"s_mul_i32 s{A.sOOFF}, s{A.sT}, {4*36864}")
    e(f"s_mov_b32 s{A.sWR}, 0")
    e(f"s_mov_b32 s{A.sGEN}, 0")
    e(f"s_mov_b32 s{A.sLEFT}, 63")
    e(f"s_mov_b32 s{sCS+1}, 0")
    a_reset(e)
    lab = e.newlabel("noinit")
    e(f"s_cmp_lg_u32 s{sW}, 0")
    e(f"s_cbranch_scc1 {lab}")
    a_flaginit(e)
    e.label(lab)
    e(f"s_mov_b32 s{A.sT}, {4*KVAT}")
    flag_wait(e, A.FL, A.FLA, A.sT, CG, sleep=2)
    for t in range(NT):
        for it in a_dma_items("k", 0):
            it.emit(e)
        e(f"s_waitcnt vmcnt({KVW})")
        if t < NT - 1:
            for it in a_dma_items("v", 0):
                it.emit(e)
            e(f"s_waitcnt vmcnt({KVW})")
    e(f"s_mov_b32 s{A.sT}, 4")
    flag_wait(e, A.FL, A.FLA, A.sT, CQ, sleep=1)
    ts(e, A.T0, A.T1, True)
    e(f"s_mov_b32 s{A.sT}, {LDS_R1}")
    a_qread(e, A.sT, A.Q, A.Q + 32)
    lab = e.newlabel("q1skip")
    e(f"s_cmp_eq_u32 s{sW}, 0")
    e(f"s_cbranch_scc1 {lab}")
    e(f"s_mov_b32 s{A.sT}, {LDS_R2}")
    a_qread(e, A.sT, A.O + 64, A.Q + 32)
    e.label(lab)
    e("s_waitcnt lgkmcnt(0)")
    e(f"ds_inc_u32 v{A.FLA}, v{A.ONE} offset:{CP}")
    e(f"s_waitcnt vmcnt({NSTEADY})")
    e.lg, e.vm = [], []
    e(f"s_mov_b32 s{A.sF}, 4")
    e(f"ds_inc_u32 v{A.FLA}, v{A.ONE} offset:{CA}")
    flag_wait(e, A.FL, A.FLA, A.sF, CA, sleep=0)
    for i in range(8):
        e(a_kread(A.FP + 4 * i, i), ("k", i))
    e("s_waitcnt lgkmcnt(0)")
    e(f"s_cmp_eq_u32 s{sW}, 0")
    e.branch("s_cbranch_scc1 L_A3_0")
    for R in (2, 3):
        e.raw(".p2align 6")
        c, seed = best_seed(lambda t, sd: a_step(t, R, 0, [], sd), [("k", i) for i in range(8)], TRIALS)
        print(f"A R={R}: est {c} seed {seed}", file=sys.stderr)
        for p in range(3):
            e.label(f"L_A{R}_{p}")
            if p == 0:
                e.hist = []
            e.lg = [("k", i) for i in range(8)]
            if "hprio" in EXP:
                e(f"s_setprio {3 if R == 3 else 0}")
            e.inA = True
            a_step(e, R, p, ool, seed)
            e.inA = False
        e.branch(f"s_branch L_A{R}_0")
        e.label(f"L_A{R}_epi", full_fence=True)
        ts(e, A.T0, A.T1, True)
        a_epilogue(e, R)
        e(f"s_add_u32 s{A.sGEN}, s{A.sGEN}, 1")
        e(f"s_cmp_eq_u32 s{A.sGEN}, 4")
        e.branch("s_cbranch_scc1 L_A_end")
        if R == 2:
            for i in range(32):
                e(f"v_mov_b32 v{A.Q+i}, v{A.O+64+i}")
        a_reset(e)
        e("s_waitcnt lgkmcnt(0)")
        ts(e, A.T0, A.T1)
        e.fence()
        if R == 2:
            for g in (1, 2, 3):
                nx = e.newlabel("nx")
                e(f"s_cmp_lg_u32 s{A.sGEN}, {g}")
                e(f"s_cbranch_scc1 {nx}")
                e(f"s_cmp_eq_u32 s{sW}, {g}")
                e(f"s_cbranch_scc1 L_A3_{g%3}")
                e(f"s_branch L_A2_{g%3}")
                e.label(nx)
        else:
            for g in (1, 2):
                e(f"s_cmp_eq_u32 s{A.sGEN}, {g}")
                e(f"s_cbranch_scc1 L_A2_{g%3}")
            e(f"s_branch L_A2_0")
    e.label("L_A_end")
    e.hist = []
    e("s_waitcnt vmcnt(0) lgkmcnt(0)")
    e(f"s_add_u32 s{A.sF}, s{A.sF}, 4")
    e(f"ds_inc_u32 v{A.FLA}, v{A.ONE} offset:{CA}")
    ts(e, A.T0, A.T1)
    e(f"s_cmp_lg_u32 s{sW}, 0")
    e("s_cbranch_scc1 L_bail")
    flag_wait(e, A.FL, A.FLA, A.sF, CA, sleep=0)
    e.vm = []
    a_signal(e)
    e.branch("s_branch L_bail")
    k = 0
    while k < len(ool):
        ool[k](e)
        k += 1
    for r in range(3):
        a_rare(e, r)
    for R in (2, 3):
        e.label(f"L_qwork{R}", full_fence=True)
        e.lg = []
        a_qstep_work(e, R, ool)
        e.fence()
        e(f"s_setpc_b64 s[{sRET}:{sRET+1}]")


class G:
    T0, T1, T2 = 1, 2, 3
    FLA, BIG, FL = 4, 5, 7
    XDMA, WD0, WD1, WB, XR0, XR1, QST, XB0 = 8, 9, 10, 11, 15, 16, 17, 18
    B = 20
    AF = 56
    ACC = 88
    LB1, LB1b, LB2, ODMA, ODMA5, OB, O5 = 4, 5, 6, 7, 8, 9, 13
    OBF = 16
    OAF = 52
    OACC = 92
    sF, sX, sWq, sTASK, sQOFF, sT, sT2, sSC, sXB, sXW, sXR, sKX, sCNT, cX, cW, sT3 = range(70, 86)
    sEX = 86
    sNX, sNW, sW0, sWE, sR0 = 92, 93, 94, 95, 96
    sTB = 6
    sO, sWo, sLB, sE, sP, sSH = 71, 72, 74, 77, 78, 79


def g_dma_x_items(tag, after=-1):
    I = lambda t, k, tg=None: Item(t, k, after, tag=tg)
    out = [I(f"s_add_u32 m0, s{G.sXW}, s{G.cX}", "s"), I(f"s_add_u32 s{G.sT}, s{G.sX}, s{G.sKX}", "s")]
    for k in range(4):
        if k:
            out.append(I(f"s_add_u32 m0, m0, 1024", "s"))
            out.append(I(f"s_add_u32 s{G.sT}, s{G.sT}, {8*1152}", "s"))
        out.append(I(f"buffer_load_dwordx4 v{G.XDMA}, {sr(S_X)}, s{G.sT} offen lds", "d", tag))
    out += [
        I(f"s_add_u32 m0, s{G.sXW}, s{G.sT2}", "s"),
        I(f"s_add_u32 s{G.sT}, s{G.sXB}, s{G.sKX}", "s"),
        I(f"s_mov_b64 exec, s[{G.sEX}:{G.sEX+1}]\nbuffer_load_dwordx4 v{G.XDMA}, {sr(S_X)}, s{G.sT} offen lds\ns_mov_b64 exec, -1", "d", tag),
        I(f"s_add_u32 s{G.sKX}, s{G.sKX}, 128", "s"),
        I(f"s_cmp_eq_u32 s{G.sKX}, {9*128}\ns_cselect_b32 s{G.sKX}, 0, s{G.sKX}", "s"),
        I(f"s_sub_u32 s{G.sNX}, s{G.sNX}, 1\ns_cselect_b32 s{G.sKX}, {OOB}, s{G.sKX}\ns_cselect_b32 s{G.cX}, 0x18000, s{G.cX}\ns_cselect_b32 s{G.sT2}, 0x18000, s{G.sT2}", "s"),
        I(f"s_add_u32 s{G.sXW}, s{G.sXW}, {XST}", "s"),
        I(f"s_cmp_eq_u32 s{G.sXW}, {LDS_X + NX*XST}\ns_cselect_b32 s{G.sXW}, {LDS_X}, s{G.sXW}", "s"),
    ]
    return out


def g_dma_w_items(par, tag, after=-1):
    I = lambda t, k, tg=None: Item(t, k, after, tag=tg)
    out = []
    for rg in range(4):
        out.append(I(f"s_add_u32 m0, s{G.cW}, {par*4096 + rg*1024}", "s"))
        out.append(I(f"buffer_load_dwordx4 v{G.WD1 if rg&1 else G.WD0}, {sr(S_WQ)}, s{G.sWq} offen lds", "d", tag))
        out.append(I(f"s_add_u32 s{G.sWq}, s{G.sWq}, {8*8192}", "s"))
    out.append(I(f"s_cmp_eq_u32 s{G.sWq}, s{G.sWE}\ns_cselect_b32 s{G.sWq}, s{G.sW0}, s{G.sWq}", "s"))
    out.append(I(f"s_sub_u32 s{G.sNW}, s{G.sNW}, 1\ns_cselect_b32 s{G.sWq}, {OOB}, s{G.sWq}\ns_cselect_b32 s{G.cW}, 0x30000, s{G.cW}", "s"))
    return out


def g_reads_A(par):
    return [f"ds_read_b64_tr_b16 {vr(G.AF + 16*par + 4*j + 2*hh, 2)}, v{G.WB+j} offset:{par*4096 + hh*512}"
            for j in range(4) for hh in range(2)]


def g_read_B(i, s1):
    if "noB" in EXP:
        return f"ds_read_b32 v{G.B+4*i}, v{G.XR1 if s1 else G.XR0} offset:{i*2048}"
    return f"ds_read_b128 {vr(G.B+4*i)}, v{G.XR1 if s1 else G.XR0} offset:{i*2048}"


def g_arrive(e):
    e(f"s_add_u32 s{G.sF}, s{G.sF}, 4")
    e(f"ds_inc_u32 v{G.FLA}, v{G.BIG} offset:{CG}", "flw")


def g_step(e, par, ool):
    M = []
    for i in range(9):
        for j in range(4):
            d = G.ACC + 16 * i + 4 * j
            pre = None
            if j == 0:
                pre = (lambda e, i=i: e.wait_lg(lambda t: t == ("a", 0) or t == ("b", 0, i)))
            M.append((f"v_mfma_f32_16x16x32_bf16 {vr(d)}, {vr(G.AF + 16*par + 4*j)}, {vr(G.B+4*i)}, {vr(d)}", pre))
    QB = []
    if par == 1:
        QB += [Item(f"s_add_u32 s{G.sXR}, s{G.sXR}, {XST}", "s", -1, 3),
               Item(f"s_cmp_eq_u32 s{G.sXR}, {LDS_X + NX*XST}\ns_cselect_b32 s{G.sXR}, {LDS_X}, s{G.sXR}", "s", -1, 3),
               Item(f"v_add_u32 v{G.XR0}, s{G.sXR}, v{G.XB0}", "v", -1, 3),
               Item(f"v_xor_b32 v{G.XR1}, 64, v{G.XR0}", "v", -1, 3)]
    QB += [Item(g_read_B(i, par ^ 1), "l", 4 * i + 3, tag=("b", 1, i)) for i in range(9)]
    def wv(e):
        if TS == 3:
            e("s_memtime s[14:15]")
        e.wait_vm(lambda t: t == ("w", 1))
        if TS == 3:
            e("s_memtime s[16:17]")
            e("s_waitcnt lgkmcnt(0)")
            e("s_sub_u32 s16, s16, s14")
            e("s_add_u32 s18, s18, s16")
    QA = [Item(wv, "s", 0)]
    QA += [Item(x, "l", 0, tag=("a", 1)) for x in g_reads_A(par ^ 1)]
    QA += [Item(lambda e: e.wait_lg(lambda t: t == ("a", 1)), "s", 14)]
    QA += g_dma_w_items(par ^ 1, ("w", 3), 14)
    if par == 1:
        w0 = Item(lambda e: e.wait_lg(lambda t: isinstance(t, tuple) and t[0] == "b" and t[1] == 0), "s", 5)
    else:
        w0 = Item(lambda e: e.wait_vm(lambda t: t == ("x", 1)), "s", 5)
    flr = Item(f"ds_read_b32 v{G.FL}, v{G.FLA} offset:{CG}", "l", 18 if par else 25, 21 if par else 28, tag="fl")

    def fcmp(e):
        e.wait_lg(lambda t: t == "fl")
        e(f"v_cmp_gt_u32 vcc, s{G.sF}, v{G.FL}")

    def fbr(e):
        lab = e.newlabel("spin")
        back = e.newlabel("spinb")
        e.branch(f"s_cbranch_vccnz {lab}", fence=False)
        e.label(back)

        def f(e):
            e.label(lab)
            e.hist = []
            flag_wait(e, G.FL, G.FLA, G.sF, CG, sleep=GSLP)
            e(f"s_branch {back}")
        ool.append(f)
    fc = Item(fcmp, "v", 0, needs=flr, delay=3)
    QS = [w0,
          Item(f"ds_inc_u32 v{G.FLA}, v{G.BIG} offset:{CG}", "w", 5, 12, tag="flw"),
          Item(f"s_add_u32 s{G.sF}, s{G.sF}, 4", "s", 5),
          flr, fc]
    QA += [Item(fbr, "b", 0, needs=fc, delay=2)]
    if par == 1:
        QA += g_dma_x_items(("x", 3), 0)
    schedule(e, M, [QS, QB, QA])

    def dec(t):
        if not isinstance(t, tuple):
            return t
        if t[0] == "x" and par == 0:
            return t
        return (t[0], t[1] - 1) + tuple(t[2:])
    e.vm = [dec(t) for t in e.vm]
    e.lg = [dec(t) for t in e.lg]


def o_tiles():
    return [(i, j) for i in range(9) for j in range(5) if j < 4 or i < 5]


OSTB = 5120


def gen_G(e):
    ool = []
    e(f"v_lshrrev_b32 v{G.T1}, 4, v0")
    e(f"v_and_b32 v{G.T0}, 7, v0")
    e(f"v_lshrrev_b32 v{G.T2}, 3, v0")
    e(f"v_lshlrev_b32 v{G.FL}, 1, v{G.T1}")
    e(f"v_xor_b32 v{G.FL}, v{G.FL}, v{G.T0}")
    e(f"v_mul_u32_u24 v{G.XDMA}, 1152, v{G.T2}")
    e(f"v_lshl_add_u32 v{G.XDMA}, v{G.FL}, 4, v{G.XDMA}")
    e(f"v_and_b32 v{G.FL}, 1, v{G.T1}")
    e(f"v_lshlrev_b32 v{G.FL}, 1, v{G.FL}")
    e(f"v_xor_b32 v{G.FL}, v{G.FL}, v{G.T0}")
    e(f"v_lshlrev_b32 v{G.WD0}, 13, v{G.T2}")
    e(f"v_lshl_add_u32 v{G.WD0}, v{G.FL}, 4, v{G.WD0}")
    e(f"v_xor_b32 v{G.WD1}, 64, v{G.WD0}")
    e(f"s_mul_i32 s{G.sXB}, s{sB}, 165888")
    e(f"s_mul_i32 s{G.sX}, s{sW}, {32*1152}")
    e(f"s_add_u32 s{G.sX}, s{G.sX}, s{G.sXB}")
    e(f"s_lshr_b32 s{G.sT}, s{sW}, 1")
    e(f"s_mul_i32 s{G.sT}, s{G.sT}, {8*1152}")
    e(f"s_add_u32 s{G.sXB}, s{G.sXB}, s{G.sT}")
    e(f"s_add_u32 s{G.sXB}, s{G.sXB}, {128*1152}")
    e(f"s_lshl_b32 s{G.sW0}, s{sJ}, 10")
    e(f"s_lshl_b32 s{G.sT}, s{sW}, 7")
    e(f"s_add_u32 s{G.sW0}, s{G.sW0}, s{G.sT}")
    e(f"s_and_b32 s{G.sR0}, s{sPAIR}, 3")
    e(f"s_lshl_b32 s{G.sR0}, s{G.sR0}, 1")
    e(f"s_add_u32 s{G.sR0}, s{G.sR0}, s{sJ}")
    if "norot" in EXP:
        e(f"s_mov_b32 s{G.sR0}, 0")
    e(f"s_and_b32 s{G.sT}, s{sW}, 1")
    e(f"s_cmp_eq_u32 s{G.sT}, 0")
    e(f"s_cselect_b32 s{G.sEX}, -1, 0")
    e(f"s_cselect_b32 s{G.sEX+1}, 0, -1")
    e(f"s_mov_b32 s{G.sTASK}, 0")
    e(f"s_mov_b32 s{G.sF}, 0")
    e.label("L_G_task")
    e(f"s_lshl_b32 s{G.cW}, s{sW}, 13")
    e(f"s_add_u32 s{G.cW}, s{G.cW}, {LDS_W}")
    e(f"s_lshl_b32 s{G.cX}, s{sW}, 12")
    e(f"s_mov_b32 s{G.sXW}, {LDS_X}")
    e(f"s_mov_b32 s{G.sXR}, {LDS_X}")
    e(f"s_sub_u32 s{G.sT}, s{G.sR0}, 9")
    e(f"s_cselect_b32 s{G.sT}, s{G.sR0}, s{G.sT}")
    e(f"s_lshl_b32 s{G.sKX}, s{G.sT}, 7")
    e(f"s_lshl_b32 s{G.sWq}, s{G.sT}, 19")
    e(f"s_add_u32 s{G.sWq}, s{G.sWq}, s{G.sW0}")
    e(f"s_add_u32 s{G.sWE}, s{G.sW0}, {576*8192}")
    e(f"s_mov_b32 s{G.sNX}, 8")
    e(f"s_mov_b32 s{G.sNW}, 17")
    e(f"s_lshr_b32 s{G.sT2}, s{sW}, 1")
    e(f"s_lshl_b32 s{G.sT2}, s{G.sT2}, 10")
    e(f"s_add_u32 s{G.sT2}, s{G.sT2}, 16384")
    e.vm, e.lg = [], []
    run = lambda items: [it.emit(e) for it in items]
    run(g_dma_w_items(0, ("w", 0)))
    run(g_dma_x_items(("x", 0)))
    e(f"v_and_b32 v{G.T0}, 15, v0")
    e(f"v_lshrrev_b32 v{G.T1}, 4, v0")
    e(f"v_lshlrev_b32 v{G.QST}, 4, v{G.T0}")
    e(f"v_lshrrev_b32 v{G.T2}, 1, v{G.T1}")
    e(f"v_lshl_add_u32 v{G.QST}, v{G.T2}, 8, v{G.QST}")
    e(f"v_and_b32 v{G.T2}, 1, v{G.T1}")
    e(f"v_lshl_add_u32 v{G.QST}, v{G.T2}, 3, v{G.QST}")
    e(f"v_and_b32 v{G.FL}, 6, v0")
    e(f"v_xor_b32 v{G.FL}, v{G.FL}, v{G.T1}")
    e(f"v_lshlrev_b32 v{G.XB0}, 7, v{G.T0}")
    e(f"v_lshl_add_u32 v{G.XB0}, v{G.FL}, 4, v{G.XB0}")
    e(f"v_lshlrev_b32 v{G.WB}, 10, v{G.T1}")
    e(f"v_bfe_u32 v{G.T0}, v0, 2, 2")
    e(f"v_lshl_add_u32 v{G.WB}, v{G.T0}, 7, v{G.WB}")
    e(f"v_bfe_u32 v{G.T0}, v0, 3, 2")
    e(f"v_lshl_add_u32 v{G.WB}, v{G.T0}, 5, v{G.WB}")
    e(f"v_and_b32 v{G.T0}, 3, v0")
    e(f"v_lshl_add_u32 v{G.WB}, v{G.T0}, 3, v{G.WB}")
    for k in range(1, 4):
        e(f"v_xor_b32 v{G.WB+k}, {32*k}, v{G.WB}")
    for k in range(4):
        e(f"v_add_u32 v{G.WB+k}, s{G.cW}, v{G.WB+k}")
    e(f"v_lshlrev_b32 v{G.FLA}, 2, v0")
    e(f"v_add_u32 v{G.FLA}, {LDS_FL}, v{G.FLA}")
    e(f"v_mov_b32 v{G.BIG}, 0x7fffffff")
    e(f"s_lshr_b32 s{G.sT}, s{sW}, 1")
    e(f"s_mul_i32 s{G.sQOFF}, s{G.sT}, 36864")
    e(f"s_add_u32 s{G.sQOFF}, s{G.sQOFF}, {LDS_R1}")
    e(f"s_and_b32 s{G.sT}, s{sW}, 1")
    e(f"s_lshl_b32 s{G.sT}, s{G.sT}, 11")
    e(f"v_add_u32 v{G.QST}, s{G.sT}, v{G.QST}")
    e(f"s_mov_b32 s{G.sSC}, {f32(math.log2(math.e) / math.sqrt(128.0))}")
    e(f"v_add_u32 v{G.XR0}, s{G.sXR}, v{G.XB0}")
    e(f"v_xor_b32 v{G.XR1}, 64, v{G.XR0}")
    for i in range(144):
        e(f"v_mov_b32 v{G.ACC+i}, 0")
    run(g_dma_x_items(("x", 1)))
    run(g_dma_w_items(1, ("w", 1)))
    ts(e, G.T0, G.T1)
    e.wait_vm(lambda t: t in (("x", 0), ("w", 0)))
    ts(e, G.T0, G.T1)
    g_arrive(e)
    for x in g_reads_A(0):
        e(x, ("a", 0))
    flag_wait(e, G.FL, G.FLA, G.sF, CG, sleep=0)
    for i in range(9):
        e(g_read_B(i, 0), ("b", 0, i))
    run(g_dma_w_items(0, ("w", 2)))
    run(g_dma_x_items(("x", 2)))
    e("s_waitcnt lgkmcnt(0)")
    e.fence()
    e(f"s_mov_b32 s{G.sCNT}, 9")
    e.raw(".p2align 6")
    e.label("L_G_loop")
    if "gts" in EXP:
        ts(e, G.T0, G.T1)
    vm0 = [("x", 1)] * 5 + [("w", 1)] * 4 + [("w", 2)] * 4 + [("x", 2)] * 5
    e.vm = list(vm0)
    e.lg = [("a", 0)] * 8 + [("b", 0, i) for i in range(9)]
    e.throttle = GTHQ
    e.nodma = "s[44:47]" if "noW" in EXP else ("s[32:35]" if "noX" in EXP else ("buffer" if "noD" in EXP else ""))
    g_step(e, 0, ool)
    g_step(e, 1, ool)
    e.nodma = ""
    e.throttle = 0
    assert e.vm == vm0[-len(e.vm):], e.vm
    e(f"s_sub_u32 s{G.sCNT}, s{G.sCNT}, 1")
    e(f"s_cmp_lg_u32 s{G.sCNT}, 0")
    e.branch("s_cbranch_scc1 L_G_loop")
    ts(e, G.T0, G.T1, True)
    e("s_waitcnt lgkmcnt(0)")
    e.vm, e.lg = [], []
    g_arrive(e)
    e(f"v_add_u32 v{G.T0}, s{G.sQOFF}, v{G.QST}")
    e(f"s_lshr_b32 s{G.sT2}, s{sW}, 1")
    e(f"s_add_u32 s{G.sT2}, s{G.sT2}, s{G.sTASK}")
    e(f"s_cmp_eq_u32 s{G.sT2}, 1")
    e(f"s_cselect_b32 s{G.sT}, {LDS_QT1}, s{G.sQOFF}")
    e(f"v_add_u32 v{G.T1}, s{G.sT}, v{G.QST}")
    e(f"s_cmp_eq_u32 s{G.sT2}, 2")
    e(f"s_cselect_b32 s{G.sT}, {LDS_QT2-8192}, s{G.sQOFF}")
    e(f"v_add_u32 v{G.T2}, s{G.sT}, v{G.QST}")

    def qpack(i, j):
        d = G.ACC + 16 * i + 4 * j
        if "pkmul" in EXP:
            for k in (0, 2):
                e(f"v_pk_mul_f32 {vr(d+k,2)}, {vr(d+k,2)}, {vr(G.B,2)}")
        else:
            for k in range(4):
                e(f"v_mul_f32 v{d+k}, s{G.sSC}, v{d+k}")
        e(f"v_cvt_pk_bf16_f32 v{d}, v{d}, v{d+1}")
        e(f"v_cvt_pk_bf16_f32 v{d+1}, v{d+2}, v{d+3}")

    def qwrite(i, j):
        d = G.ACC + 16 * i + 4 * j
        b = G.T1 if i < 2 else (G.T2 if i < 4 else G.T0)
        e(f"ds_write_b64 v{b}, {vr(d,2)} offset:{4096*i + 512*j}")
    tl = [(i, j) for i in range(9) for j in range(4)]
    e(f"v_mov_b32 v{G.B}, s{G.sSC}")
    e(f"v_mov_b32 v{G.B+1}, s{G.sSC}")
    for t in tl[:6]:
        qpack(*t)
    flag_wait(e, G.FL, G.FLA, G.sF, CG, sleep=0)
    for n, t in enumerate(tl):
        qwrite(*t)
        if n + 6 < len(tl):
            qpack(*tl[n + 6])
    e(f"s_add_u32 s{G.sTASK}, s{G.sTASK}, 2")
    e("s_waitcnt lgkmcnt(0)")
    e.lg = []
    e(f"ds_inc_u32 v{G.FLA}, v{G.BIG} offset:{CQ}")
    ts(e, G.T0, G.T1)
    e(f"s_lshl_b32 s{G.sT2}, s{G.sTASK}, 1")
    flag_wait(e, G.FL, G.FLA, G.sT2, CP, sleep=1)
    e(f"s_add_u32 s{G.sW0}, s{G.sW0}, 512")
    e(f"s_cmp_lt_u32 s{G.sTASK}, 4")
    e.branch("s_cbranch_scc1 L_G_task")

    tiles = o_tiles()
    acc = {t: G.OACC + 4 * k for k, t in enumerate(tiles)}
    e(f"s_lshr_b32 s{G.sP}, s{sJ}, 1")
    e(f"s_and_b32 s{G.sE}, s{sJ}, 1")
    e(f"v_lshlrev_b32 v{G.T0}, 4, v0")
    e(f"s_lshl_b32 s{G.sT}, s{G.sE}, 12")
    e(f"v_add_u32 v{G.LB1}, s{G.sT}, v{G.T0}")
    e(f"v_add_u32 v{G.LB1b}, 4096, v{G.LB1}")
    e(f"s_cmp_eq_u32 s{G.sE}, 0")
    e(f"s_cselect_b32 s{G.sT}, 5120, 0")
    e(f"v_add_u32 v{G.LB2}, s{G.sT}, v{G.T0}")
    e(f"v_lshrrev_b32 v{G.T1}, 4, v0")
    e(f"v_lshlrev_b32 v{G.T1}, 1, v{G.T1}")
    e(f"v_and_b32 v{G.T0}, 7, v0")
    e(f"v_xor_b32 v{G.T0}, v{G.T0}, v{G.T1}")
    e(f"v_lshrrev_b32 v{G.T2}, 3, v0")
    e(f"v_mul_u32_u24 v{G.ODMA}, 1152, v{G.T2}")
    e(f"v_lshl_add_u32 v{G.ODMA}, v{G.T0}, 4, v{G.ODMA}")
    e(f"s_lshl_b32 s{G.sT}, s{sJ}, 7")
    e(f"v_add_u32 v{G.ODMA}, s{G.sT}, v{G.ODMA}")
    e(f"v_lshlrev_b32 v{G.ODMA5}, 4, v0")
    e(f"s_lshl_b32 s{G.sT}, s{sBLK}, 2")
    e(f"s_add_u32 s{G.sT}, s{G.sT}, s{G.sP}")
    e(f"s_lshl_b32 s{G.sT}, s{G.sT}, 17")
    e(f"s_add_u32 s{G.sT}, s{G.sT}, {WSW}")
    e(f"v_add_u32 v{G.ODMA5}, s{G.sT}, v{G.ODMA5}")
    e(f"s_mov_b32 s97, 0x1c71c71d")
    e(f"s_mul_i32 s{G.sLB}, s{sW}, 11264")
    e(f"s_add_u32 s{G.sLB}, s{G.sLB}, {LDS_OST}")
    e(f"v_lshrrev_b32 v{G.T0}, 2, v0")
    e(f"v_lshlrev_b32 v{G.OB}, 7, v{G.T0}")
    e(f"v_bfe_u32 v{G.T2}, v0, 3, 2")
    e(f"v_lshl_add_u32 v{G.OB}, v{G.T2}, 5, v{G.OB}")
    e(f"v_and_b32 v{G.T2}, 3, v0")
    e(f"v_lshl_add_u32 v{G.OB}, v{G.T2}, 3, v{G.OB}")
    for k in range(1, 4):
        e(f"v_xor_b32 v{G.OB+k}, {32*k}, v{G.OB}")
    for k in range(4):
        e(f"v_add_u32 v{G.OB+k}, s{G.sLB}, v{G.OB+k}")
    e(f"v_lshlrev_b32 v{G.O5}, 3, v0")
    e(f"v_add_u32 v{G.O5}, s{G.sLB}, v{G.O5}")
    e(f"s_lshl_b32 s{G.sT}, s{sPAIR}, 2")
    e(f"s_add_u32 s{G.sT}, s{G.sT}, s{sW}")
    e(f"s_mul_i32 s{G.sO}, s{G.sT}, {8*36864}")
    e(f"s_mul_i32 s{G.sWo}, s{sW}, {8*147456}")
    e(f"s_and_b32 s{G.sSH}, s{sW}, 1")
    e(f"s_lshl_b32 s{G.sSH}, s{G.sSH}, 4")
    e(f"s_mov_b32 s{G.sTASK}, 0")
    for q in range(8):
        e(f"s_add_u32 s{G.sT}, s{G.sR0}, {q}")
        e(f"s_and_b32 s{G.sT2}, s{G.sT}, 3")
        e(f"s_mul_i32 s{G.sTB+q}, s{G.sT2}, 9216")
        e(f"s_bitcmp1_b32 s{G.sT}, 2")
        e(f"s_cselect_b32 s{G.sT}, 147456, 0")
        e(f"s_add_u32 s{G.sTB+q}, s{G.sTB+q}, s{G.sT}")

    def woff(q):
        g, q = divmod(q, 8)
        return g * 147456 + (q >> 2) * 4 * 147456 + (q & 3) * 36864

    def boff(q):
        return (q >> 2) * 4 * 36864 + (q & 3) * 9216

    def dmaW(q, tag, after=-1):
        b = (q & 1) * OSTB
        I = lambda t, k, tg=None: Item(t, k, after, tag=tg)
        out = [I(f"s_lshl2_add_u32 s{G.sT}, s{G.sTB+(q&7)}, s{G.sWo}", "s")]
        if q >= 8:
            out.append(I(f"s_add_u32 s{G.sT}, s{G.sT}, 147456", "s"))
            out.append(I(f"s_cmp_eq_u32 s{G.sTASK}, 3\ns_cselect_b32 s{G.sT}, {OOB}, s{G.sT}", "s"))
        out.append(I(f"s_add_u32 m0, s{G.sLB}, {b + 4096}", "s"))
        out.append(I(f"s_lshr_b32 s{G.sT3}, s{G.sT}, 12\ns_mul_hi_u32 s{G.sT3}, s{G.sT3}, s97\ns_lshl_b32 s{G.sT3}, s{G.sT3}, 10", "s"))
        out.append(I(f"buffer_load_dwordx4 v{G.ODMA5}, {sr(S_WS)}, s{G.sT3} offen sc1 lds", "d", tag))
        for rg in range(4):
            out.append(I(f"s_add_u32 m0, s{G.sLB}, {b + rg*1024}", "s"))
            out.append(I(f"buffer_load_dwordx4 v{G.ODMA}, {sr(S_WO)}, s{G.sT} offen lds", "d", tag))
            if rg < 3:
                out.append(I(f"s_add_u32 s{G.sT}, s{G.sT}, {8*1152}", "s"))
        return out

    def loadB(i):
        if i < 4:
            return f"buffer_load_dwordx4 {vr(G.OBF+4*i)}, v{G.LB1}, {sr(S_WS)}, s{G.sT2} offen offset:{1024*i} sc1"
        if i == 4:
            return f"buffer_load_dwordx4 {vr(G.OBF+4*i)}, v{G.LB1b}, {sr(S_WS)}, s{G.sT2} offen sc1"
        return f"buffer_load_dwordx4 {vr(G.OBF+4*i)}, v{G.LB2}, {sr(S_WS)}, s{G.sT2} offen offset:{1024*(i-5)} sc1"

    def readsA(q):
        par = q & 1
        b = par * OSTB
        out = [f"ds_read_b64_tr_b16 {vr(G.OAF+20*par+4*j+2*u,2)}, v{G.OB+j} offset:{b + u*2048}"
               for j in range(4) for u in range(2)]
        out += [f"ds_read_b64_tr_b16 {vr(G.OAF+20*par+16+2*u,2)}, v{G.O5} offset:{b + 4096 + u*512}" for u in range(2)]
        return out

    e(f"s_lshl_b32 s{G.sT}, s{sBLK}, 7")
    e(f"v_mov_b32 v{G.T1}, s{G.sT}")
    e.label("L_O_init")
    e(f"s_sub_u32 s{sBUD}, s{sBUD}, 1")
    e("s_cbranch_scc1 L_bail")
    e(f"buffer_load_dword v{G.T0}, v{G.T1}, {sr(S_DBG)}, 0 offen sc1")
    e("s_waitcnt vmcnt(0)")
    e(f"v_cmp_gt_u32 vcc, 0x80, v{G.T0}")
    e("s_cbranch_vccnz L_O_init")
    e.vm, e.lg = [], []
    run(dmaW(0, ("w", 0)))
    run(dmaW(1, ("w", 1)))
    for i in range(164):
        e(f"v_mov_b32 v{G.OACC+i}, 0")
    e.wait_vm(lambda t: t == ("w", 0))
    for x in readsA(0):
        e(x, ("a", 0))
    e("s_waitcnt lgkmcnt(0)")
    e.lg = []
    run(dmaW(2, ("w", 2)))
    e(f"s_lshl_b32 s{G.sT}, s{sPAIR}, 3")
    e(f"s_lshl_b32 s{G.sT2}, s{sW}, 1")
    e(f"s_add_u32 s{G.sT}, s{G.sT}, s{G.sT2}")
    e(f"s_lshl_b32 s{G.sT}, s{G.sT}, 8")
    e(f"s_add_u32 s{G.sT}, s{G.sT}, {FLG}")
    e(f"v_and_b32 v14, 1, v0")
    e(f"v_lshlrev_b32 v14, 8, v14")
    e(f"v_add_u32 v14, s{G.sT}, v14")
    e(f"v_mov_b32 v{G.T2}, {LDS_FL+CL}")
    e.fence()
    e.raw(".p2align 6")
    e.label("L_O_task")
    if "serialO" in EXP:
        e(f"s_mov_b32 s{G.sT}, 4")
        flag_wait(e, G.T0, G.T2, G.sT, 0, sleep=4)
    e(f"s_add_u32 s{G.sT}, s{G.sTASK}, 1")
    flag_wait(e, G.T0, G.T2, G.sT, 0, sleep=4)
    if "wb" in EXP:
        lab = e.newlabel("nowb")
        e(f"s_cmp_lg_u32 s{sW}, 0")
        e(f"s_cbranch_scc1 {lab}")
        e("buffer_wbl2 sc1")
        e("s_waitcnt vmcnt(0)")
        e(f"s_lshl_b32 s{G.sT2}, s{sPAIR}, 3")
        e(f"s_add_u32 s{G.sT2}, s{G.sT2}, s{sJ}")
        e(f"s_lshl_b32 s{G.sT2}, s{G.sT2}, 8")
        e(f"s_add_u32 s{G.sT2}, s{G.sT2}, {FLG}")
        e(f"v_mov_b32 v{G.T0}, s{G.sT2}")
        e(f"v_mov_b32 v{G.T1}, s{G.sT}")
        e("s_mov_b64 exec, 1")
        e(f"buffer_store_dword v{G.T1}, v{G.T0}, {sr(S_WS)}, 0 offen sc1")
        e("s_mov_b64 exec, -1")
        e.label(lab)
    if "avoid" in EXP:
        lab = e.newlabel("avoid")
        e.label(lab)
        e("s_sleep 4")
        e(f"ds_read_b32 v{G.T0}, v{G.T2}")
        e("s_waitcnt lgkmcnt(0)")
        e(f"v_cmp_eq_u32 vcc, s{sW}, v{G.T0}")
        e(f"s_cbranch_vccnz {lab}")
    e.label("L_O_poll")
    e(f"s_sub_u32 s{sBUD}, s{sBUD}, 1")
    e("s_cbranch_scc1 L_bail")
    e(f"buffer_load_dword v{G.T0}, v14, {sr(S_WS)}, 0 offen sc1")
    e("s_waitcnt vmcnt(0)")
    e.vm = []
    e(f"v_cmp_gt_u32 vcc, s{G.sT}, v{G.T0}")
    e("s_cbranch_vccz L_O_go")
    e("s_sleep 8")
    e("s_branch L_O_poll")
    e.label("L_O_go")
    ts(e, G.T0, G.T1, True)
    e(f"ds_read_b32 v{G.T0}, v{G.T2}")
    e("s_waitcnt lgkmcnt(0)")
    e(f"v_cmp_eq_u32 vcc, 4, v{G.T0}")
    e("s_cbranch_vccnz L_O_free")
    for thr in (GTHO, 0):
        if thr != GTHO or GTHO == 0:
            e.label("L_O_free")
        e.vm = []
        e(f"s_add_u32 s{G.sT2}, s{G.sO}, s{G.sTB}")
        e.throttle = thr
        if "fewreq" in EXP:
            e.nodma = ("v8,", "v6,")
        for i in range(9):
            Item(loadB(i), "d", tag=("b", 0, i)).emit(e)
        e.lg = [("a", 0)] * 10
        for q in range(8):
            par = q & 1
            M = []
            lastuse = {}
            for i in range(9):
                for n, j in enumerate([j for j in range(5) if (i, j) in acc]):
                    pre = None
                    if n == 0:
                        def pre(e, i=i, q=q):
                            if i == 0:
                                e.wait_lg(lambda t: t == ("a", q))
                            e.wait_vm(lambda t: t == ("b", q, i))
                    M.append((f"v_mfma_f32_16x16x32_bf16 {vr(acc[(i,j)])}, {vr(G.OAF+20*par+4*j)}, {vr(G.OBF+4*i)}, {vr(acc[(i,j)])}", pre))
                    lastuse[i] = len(M) - 1
            QB = []
            if q < 7:
                QB.append(Item(f"s_add_u32 s{G.sT2}, s{G.sO}, s{G.sTB+q+1}", "s", -1, 3))
                QB += [Item(loadB(i), "d", lastuse[i], tag=("b", q + 1, i)) for i in range(9)]
            QA = [Item(lambda e, q=q: e.wait_vm(lambda t: t == ("w", q + 1)), "s", 0)]
            QA += [Item(x, "l", 0, tag=("a", q + 1)) for x in readsA(q + 1)]
            QA += [Item(lambda e, q=q: e.wait_lg(lambda t: t == ("a", q + 1)), "s", 18)]
            QA += dmaW(q + 3, ("w", q + 3), 18)
            schedule(e, M, [QB, QA])
        e.throttle = 0
        e.nodma = ""

        if GTHO == 0:
            break
        if thr == GTHO:
            e.branch("s_branch L_O_next")
    e.label("L_O_next")
    e(f"s_add_u32 s{G.sO}, s{G.sO}, 36864")
    e(f"s_add_u32 s{G.sWo}, s{G.sWo}, 147456")
    e(f"s_add_u32 s{G.sTASK}, s{G.sTASK}, 1")
    ts(e, G.T0, G.T1)
    e(f"s_cmp_lt_u32 s{G.sTASK}, 4")
    e.branch("s_cbranch_scc1 L_O_task")
    e("s_waitcnt vmcnt(0) lgkmcnt(0)")
    e.vm, e.lg = [], []
    e(f"v_lshlrev_b32 v{G.FLA}, 2, v0")
    e(f"v_add_u32 v{G.FLA}, {LDS_FL}, v{G.FLA}")
    e(f"v_mov_b32 v{G.BIG}, 0x7fffffff")
    RED, OST, R2_ = 8, 9, 10
    e(f"v_lshlrev_b32 v{RED}, 4, v0")
    e(f"v_and_b32 v{G.T0}, 15, v0")
    e(f"v_lshrrev_b32 v{G.T1}, 4, v0")
    e(f"v_mul_u32_u24 v{OST}, 2304, v{G.T0}")
    e(f"v_lshl_add_u32 v{OST}, v{G.T1}, 3, v{OST}")
    e(f"s_mul_i32 s{G.sT}, s{sB}, {144*2304}")
    e(f"s_mul_i32 s{G.sT2}, s{sBLK}, 1152")
    e(f"s_add_u32 s{G.sT}, s{G.sT}, s{G.sT2}")
    e(f"v_add_u32 v{OST}, s{G.sT}, v{OST}")
    e(f"s_mul_i32 s{G.sO}, s{G.sE}, {4*16*2304}")
    e(f"s_cmp_eq_u32 s{G.sE}, 0")
    e(f"s_cselect_b32 s{G.sWo}, {5*16*2304}, 0")
    e(f"s_lshl_b32 s{G.sCNT}, s{sJ}, 7")
    e(f"s_lshl_b32 s{G.sT3}, s{G.sP}, 5")
    e(f"v_add_u32 v{R2_}, 65536, v{RED}")
    e(f"v_add_u32 v11, 131072, v{RED}")
    for w in range(1, 4):
        e(f"s_cmp_eq_u32 s{sW}, {w}")
        e.branch(f"s_cbranch_scc1 L_red{w}")
    NTL = len(tiles)

    def slot(src, k):
        n = len([x for x in range(k) if x % 4 != src])
        if n < 16:
            return src * 16384 + n * 1024
        if n < 28:
            return LDS_R2 + src * 12288 + (n - 16) * 1024
        return LDS_OST + src * 11264 + (n - 28) * 1024
    assert LDS_R2 + 49152 <= LDS_FL

    def adr(a):
        return f"v{RED if a < 65536 else (R2_ if a < 131072 else 11)}", a & 0xffff

    for w in range(4):
        e.label(f"L_red{w}")
        e.hist = []
        e.lg = []
        for k, t in enumerate(tiles):
            if k % 4 != w:
                r_, o_ = adr(slot(w, k))
                e(f"ds_write_b128 {r_}, {vr(acc[t])} offset:{o_}")
        e("s_waitcnt lgkmcnt(0)")
        e.lg = []
        g_arrive(e)
        flag_wait(e, G.FL, G.FLA, G.sF, CG, sleep=0)
        own = [k for k in range(NTL) if k % 4 == w]
        free = [acc[tiles[k]] for k in range(NTL) if k % 4 != w]
        tmp = {}
        n = 0
        for k in own:
            for src in range(4):
                if src == w:
                    continue
                a = slot(src, k)
                r_ = free[n] if n < len(free) else G.OBF + 4 * (n - len(free))
                tmp[(k, src)] = r_
                n += 1
                ra, o_ = adr(a)
                e(f"ds_read_b128 {vr(r_)}, {ra} offset:{o_}", (k, src))
        for k in own:
            t = tiles[k]
            for src in range(4):
                if src == w:
                    continue
                e.wait_lg(lambda x: x == (k, src))
                for q in range(4):
                    e(f"v_add_f32 v{acc[t]+q}, v{acc[t]+q}, v{tmp[(k,src)]+q}")
            e(f"v_cvt_pk_bf16_f32 v{acc[t]}, v{acc[t]}, v{acc[t]+1}")
            e(f"v_cvt_pk_bf16_f32 v{acc[t]+1}, v{acc[t]+2}, v{acc[t]+3}")
            i, j = t
            if i < 5:
                e(f"s_add_u32 s{G.sT}, s{G.sO}, {i*16*2304}")
            else:
                e(f"s_add_u32 s{G.sT}, s{G.sWo}, {(i-5)*16*2304}")
            if j < 4:
                e(f"s_add_u32 s{G.sT}, s{G.sT}, s{G.sCNT}")
                off = 32 * j
            else:
                e(f"s_add_u32 s{G.sT}, s{G.sT}, s{G.sT3}")
                off = 1024
            e(f"buffer_store_dwordx2 {vr(acc[t],2)}, v{OST}, {sr(S_OUT)}, s{G.sT} offen offset:{off}")
        ts(e, G.T0, G.T1)
        e.branch("s_branch L_bail")
    for f in ool:
        f(e)


def main():
    e = E()
    e.throttle = 0
    e.raw(f"; @launch grid=(256,1,1) block=(512,1,1) lds={LDS_TOTAL}")
    e.raw('.amdgcn_target "amdgcn-amd-amdhsa--gfx950"\n.text')
    e.raw(f".globl {NAME}_kernel\n.p2align 8\n.type {NAME}_kernel,@function\n{NAME}_kernel:")
    prologue(e, "L_end")
    e("s_barrier")
    ts_init(e)
    ts(e, 1, 2)
    e(f"s_cmp_lt_u32 s{sWAVE}, 4")
    e.branch("s_cbranch_scc1 L_A")
    gen_G(e)
    e.label("L_A")
    e.hist = []
    gen_A(e)
    e.label("L_bail")
    e("s_waitcnt vmcnt(0) lgkmcnt(0)")
    e.label("L_end")
    e("s_endpgm")
    e.raw('.section .rodata,"a"')
    e.raw(f""".p2align 6
.amdhsa_kernel {NAME}_kernel
  .amdhsa_next_free_vgpr 256
  .amdhsa_next_free_sgpr 102
  .amdhsa_accum_offset 256
  .amdhsa_group_segment_fixed_size 0
  .amdhsa_kernarg_size 104
  .amdhsa_user_sgpr_count 2
  .amdhsa_user_sgpr_kernarg_segment_ptr 1
  .amdhsa_system_sgpr_workgroup_id_x 1
.end_amdhsa_kernel""")
    sys.stdout.write(e.text())
    print(f"instructions: {e.n_ins}, max vgpr {e.maxv}", file=sys.stderr)


if __name__ == "__main__":
    main()
```

```python
import sys, math, struct, os
from emit import E, vr, sr

NAME = "concat_heads__mha_block_cached__gqa_block_cached__near_ridge"
WS_BYTES = 292618240
OWS = 0
NI = 8
NT = NI // 2
NX = 3
XST = 18432
LDS_QT1 = NI * 8192
LDS_ST = LDS_QT1 + 8192
LDS_X = LDS_ST
LDS_W = LDS_ST + NX * XST
LDS_R1 = LDS_ST
LDS_R2 = LDS_R1 + 36864
LDS_QT2 = LDS_R2 + 36864
LDS_FL = LDS_W + 32768
assert LDS_QT2 + 8192 <= LDS_FL
LDS_OST = LDS_QT1
LDS_TOTAL = LDS_FL + 1280
CA, CG, CQ, CP, CL = 0, 256, 512, 768, 1024
assert LDS_TOTAL <= 163840, LDS_TOTAL
THR = 16.0
TS = int(os.environ.get("TS", "0"))
TSOFF = 80000000
EXP = os.environ.get("EXP", "")
KVF = os.environ.get("KVF", "nt")
OOB = 0x40000000
WSW = 42000000 // 256 * 256
ASLP = int(os.environ.get("ASLP", "0"))
GSLP = int(os.environ.get("GSLP", "0"))
KVW = int(os.environ.get("KVW", "2"))
TRIALS = int(os.environ.get("TRIALS", "400"))
KEARLY = int(os.environ.get("KEARLY", "2"))
KDPOS = int(os.environ.get("KDPOS", "3"))
KVAT = int(os.environ.get("KVAT", "16"))
GTHQ = int(os.environ.get("GTHQ", "0"))
GTHO = int(os.environ.get("GTHO", "4"))
FLG = 40000000 // 256 * 256
POLL = os.environ.get("POLL", "sload")
QSTEP = int(os.environ.get("QSTEP", "4"))


def f32(x):
    return "0x%08x" % struct.unpack("<I", struct.pack("<f", x))[0]


S_X, S_K, S_V, S_WQ, S_WO, S_OUT, S_DBG, S_WS = 32, 36, 40, 44, 48, 52, 56, 60
sWAVE, sW, sPAIR, sB, sJ, sBLK = 64, 65, 66, 67, 68, 69
sRET = 88
sBUD = 90
sTS = 91


def prologue(e, endlabel):
    e("s_cmp_ge_u32 s2, 256")
    e(f"s_cbranch_scc1 {endlabel}")
    e("s_load_dwordx16 s[4:19], s[0:1], 0")
    e("s_load_dwordx8 s[20:27], s[0:1], 64")
    e("s_load_dwordx2 s[28:29], s[0:1], 96")
    e("v_lshrrev_b32 v1, 6, v0")
    e(f"v_readfirstlane_b32 s{sWAVE}, v1")
    e("v_and_b32 v0, 63, v0")
    e(f"v_lshlrev_b32 v1, 2, v0")
    e(f"v_add_u32 v1, {LDS_FL}, v1")
    e("v_mov_b32 v2, 0")
    for k in range(5):
        e(f"ds_write_b32 v1, v2 offset:{256*k}")
    e(f"s_and_b32 s{sW}, s{sWAVE}, 3")
    e("s_and_b32 s3, s2, 7")
    e("s_lshl_b32 s3, s3, 2")
    e(f"s_lshr_b32 s{sPAIR}, s2, 6")
    e(f"s_add_u32 s{sPAIR}, s{sPAIR}, s3")
    e(f"s_lshr_b32 s{sJ}, s2, 3")
    e(f"s_and_b32 s{sJ}, s{sJ}, 7")
    e(f"s_and_b32 s{sB}, s{sPAIR}, 15")
    e(f"s_lshr_b32 s{sBLK}, s{sPAIR}, 4")
    e(f"s_mov_b32 s{sBUD}, 0x40000")
    for dst, nbytes in ((S_X, 16 * 144 * 576 * 2), (S_K, 1 << 26), (S_V, 1 << 26), (S_WQ, 576 * 4096 * 2),
                        (S_WO, 576 * 4096 * 2), (S_OUT, 16 * 144 * 1152 * 2), (S_DBG, 256), (S_WS, WS_BYTES)):
        e(f"s_mov_b32 s{dst+2}, {nbytes}")
        e(f"s_mov_b32 s{dst+3}, 0x20000")
    e("s_waitcnt lgkmcnt(0)")
    e.lg = []
    e(f"s_cmp_eq_u32 s{sBLK}, 0")
    for dst, a, b in ((S_X, 4, 14), (S_K, 6, 16), (S_V, 8, 18), (S_WQ, 10, 20), (S_WO, 12, 22)):
        e(f"s_cselect_b32 s{dst}, s{a}, s{b}")
        e(f"s_cselect_b32 s{dst+1}, s{a+1}, s{b+1}")
    for dst, src in ((S_OUT, 24), (S_DBG, 26), (S_WS, 28)):
        e(f"s_mov_b32 s{dst}, s{src}")
        e(f"s_and_b32 s{dst+1}, s{src+1}, 0xffff")
    for dst in (S_X, S_K, S_V, S_WQ, S_WO):
        e(f"s_and_b32 s{dst+1}, s{dst+1}, 0xffff")


def ts_init(e):
    if not TS:
        return
    e(f"s_lshl_b32 s{sTS}, s2, 3")
    e(f"s_add_u32 s{sTS}, s{sTS}, s{sWAVE}")
    e(f"s_lshl_b32 s{sTS}, s{sTS}, 11")
    e(f"s_add_u32 s{sTS}, s{sTS}, {TSOFF}")
    e("s_mov_b32 s14, 0")
    e("s_mov_b32 s15, 0")


def ts(e, va, vd, budget=False):
    if TS not in (1, 3, 4):
        return
    e("s_memtime s[4:5]" if "rt" not in EXP else "s_memrealtime s[4:5]")
    e("s_waitcnt lgkmcnt(0)")
    e(f"v_mov_b32 v{va}, 0")
    e(f"v_mov_b32 v{vd}, s4")
    e(f"buffer_store_dword v{vd}, v{va}, {sr(S_WS)}, s{sTS} offen")
    e.vm.pop()
    e(f"s_add_u32 s{sTS}, s{sTS}, 4")
    if budget:
        for rg in ([sBUD] if TS == 1 else [14, 15]):
            e(f"v_mov_b32 v{vd}, s{rg}")
            if TS == 4:
                e(f"v_or_b32 v{vd}, 0x80000000, v{vd}")
            e(f"buffer_store_dword v{vd}, v{va}, {sr(S_WS)}, s{sTS} offen")
            e.vm.pop()
            e(f"s_add_u32 s{sTS}, s{sTS}, 4")


def flag_check(e, ool, vfl, vaddr, sF, off, tag="fl"):
    e.wait_lg(lambda t: t == tag)
    e(f"v_cmp_gt_u32 vcc, s{sF}, v{vfl}")
    lab = e.newlabel("spin")
    back = e.newlabel("spinb")
    e.branch(f"s_cbranch_vccnz {lab}", fence=False)
    e.label(back)

    def f(e):
        e.label(lab)
        e.hist = []
        e(f"ds_read_b32 v{vfl}, v{vaddr} offset:{off}")
        e(f"s_sub_u32 s{sBUD}, s{sBUD}, 1")
        e("s_cbranch_scc1 L_bail")
        e("s_waitcnt lgkmcnt(0)")
        e(f"v_cmp_gt_u32 vcc, s{sF}, v{vfl}")
        e.branch(f"s_cbranch_vccz {back}", fence=False)
        e.branch(f"s_branch {lab}", fence=False)
    ool.append(f)


def flag_wait(e, vfl, vaddr, sF, off, sleep=2):
    lab = e.newlabel("fw")
    e.label(lab)
    if sleep:
        e(f"s_sleep {sleep}")
    e(f"s_sub_u32 s{sBUD}, s{sBUD}, 1")
    e("s_cbranch_scc1 L_bail")
    e(f"ds_read_b32 v{vfl}, v{vaddr} offset:{off}")
    e("s_waitcnt lgkmcnt(0)")
    e.lg = []
    e(f"v_cmp_gt_u32 vcc, s{sF}, v{vfl}")
    e.branch(f"s_cbranch_vccnz {lab}", fence=False)


COST = dict(s=1, v=1, t=2, l=2, d=3, w=3, b=3)


class Item:
    def __init__(self, do, kind, after=-1, before=10**9, tag=None, cost=None, needs=None, delay=0):
        self.do, self.kind, self.after, self.before, self.tag = do, kind, after, before, tag
        self.cost = cost if cost is not None else COST[kind]
        self.needs, self.delay = needs, delay
        self.at = None

    def ready(self, k):
        if self.after > k:
            return False
        if self.needs is not None:
            return self.needs.at is not None and self.needs.at + self.delay <= k
        return True

    def emit(self, e, k=10**6):
        assert self.needs is None or self.needs.at is not None, ("unmet dependency", self.do)
        self.at = k
        if self.kind == "d" and e.throttle and len(e.vm) >= e.throttle:
            n = e.throttle - 1
            e(f"s_waitcnt vmcnt({n})")
            e.vm = e.vm[len(e.vm) - n:] if n else []
        acc = None
        if TS == 4 and getattr(e, "inA", False) and not callable(self.do):
            if self.kind == "d":
                acc = 15
            elif "vmcnt" in self.do:
                acc = 14
        if acc:
            e("s_memtime s[16:17]")
            e(self.do, self.tag)
            e("s_memtime s[18:19]")
            e("s_waitcnt lgkmcnt(0)")
            e("s_sub_u32 s18, s18, s16")
            e(f"s_add_u32 s{acc}, s{acc}, s18")
        elif callable(self.do):
            self.do(e)
        elif self.kind == "d" and getattr(e, "nodma", "") and any(x in self.do for x in ([e.nodma] if isinstance(e.nodma, str) else e.nodma)):
            e("s_nop 0")
            e.vm.append(self.tag)
        else:
            e(self.do, self.tag)


ASLOTS = int(os.environ.get('ASLOTS', '4'))
import random


def estimate(lines):
    gaps = []
    cur = 0
    prev = None
    for l in lines:
        l = l.strip()
        if not l or l.endswith(":") or l.startswith("."):
            continue
        mn = l.split()[0]
        if "mfma" in mn:
            gaps.append(cur); cur = 1; prev = "m"
            continue
        if mn.startswith("v_"):
            c = 2 if mn in ("v_exp_f32", "v_rcp_f32") else 1
            if prev == "m":
                c += 1
            prev = "v"
        elif mn.startswith("ds_read"):
            c = 2 + (1 if prev == "v" else 0); prev = "l"
        elif mn.startswith("ds_"):
            c = 3 + (2 if prev == "v" else 0); prev = "l"
        elif mn.startswith("buffer"):
            c = 3 + (1 if prev == "v" else 0); prev = "l"
        elif mn.startswith("s_cbranch") or mn == "s_branch":
            c = 3; prev = "s"
        elif mn == "s_nop":
            c = int(l.split()[1]) + 1; prev = "s"
        else:
            c = 1; prev = "s"
        cur += c
    gaps.append(cur)
    return 4 * (gaps[0] + sum(max(4, g) for g in gaps[1:]))


def best_seed(fn, lg0, trials):
    best = (10**9, None)
    for seed in range(trials):
        t = E()
        t.throttle = 0
        t.lg = list(lg0)
        fn(t, seed)
        c = estimate(t.lines)
        if c < best[0]:
            best = (c, seed)
    return best


def schedule(e, mfmas, queues, NSL0=3, spread=False, seed=None):
    rng = random.Random(seed) if seed is not None else None
    allq = queues
    if rng:
        pw = rng.choice([0.0, 0.1, 0.2, 0.35])
        nsl_choices = rng.choice([[3, 4], [3, 4, 5], [4], [3, 3, 4], [4, 5], [3, 4, 4, 5, 6]])

    def force(it, k):
        if it.at is not None:
            return
        for q in queues:
            if it in q:
                while True:
                    x = q[0]
                    if x.needs is not None:
                        force(x.needs, k)
                    q.pop(0)
                    x.emit(e, k)
                    if x is it:
                        return

    for k, (txt, pre) in enumerate(mfmas):
        for q in queues:
            for it in [x for x in q if x.before <= k]:
                force(it, k - 1)
        if pre:
            pre(e)
        e(txt)
        slot = 0
        NSL = NSL0
        queues = allq
        if rng:
            NSL = rng.choice(nsl_choices)
            if rng.random() < pw:
                queues = list(allq)
                rng.shuffle(queues)
            spread = rng.random() < 0.7
        valu_seen = False
        progress = True
        while slot < NSL and progress:
            progress = False
            cand = None
            anyv = any(q and q[0].ready(k) and q[0].kind in "vt" for q in queues)
            for q in queues:
                if q and q[0].ready(k) and q[0].kind in "ldwb" and not valu_seen and (slot == 0 or (slot + q[0].cost <= NSL and not (spread and anyv))):
                    cand = q
                    break
            if cand is None and slot == 0:
                for q in queues:
                    if q and q[0].ready(k) and q[0].kind == "s":
                        cand = q
                        break
                if cand is None:
                    slot = 1
            if cand is None:
                for q in queues:
                    if q and q[0].ready(k) and q[0].kind in "vt" and (slot + q[0].cost <= NSL or slot <= 1):
                        cand = q
                        break
            if cand is None:
                for q in queues:
                    if q and q[0].ready(k) and q[0].kind == "s":
                        cand = q
                        break
            if cand is not None:
                it = cand.pop(0)
                it.emit(e, k)
                slot += it.cost
                if it.kind in "vt":
                    valu_seen = True
                progress = True
    for q in queues:
        while q:
            force(q[0], len(mfmas))


class A:
    DMA, KR0, KR1, VR0, VR1, VR2, VR3, FLA, FL, MX, T2 = range(1, 12)
    T0, T1 = MX, FL
    ONE = 12
    L = 16
    C = 28
    S = 40
    FP = 64
    Q = 112
    O = 160
    sF, sMK, sWR, sG, sTHR, sFLOOR, cK1, cK2, cV1, cV2, sSP, sGEN, sT2, sOOFF, sLEFT, sT, sDL, sPH = range(70, 88)


NSTEADY = 2 * (NI - 3)
NOST = 8


def a_dma_items(kind, after):
    it = []
    if kind == "k":
        it.append(Item(f"s_add_u32 m0, s{A.sWR}, s{A.cK1}", "s", after))
        it.append(Item(f"buffer_load_dwordx4 v{A.DMA}, {sr(S_K)}, s{A.sG} offen {KVF} lds", "d", after))
        it.append(Item(f"s_add_u32 m0, s{A.sWR}, s{A.cK2}", "s", after))
        it.append(Item(f"buffer_load_dwordx4 v{A.DMA}, {sr(S_K)}, s{A.sG} offen offset:128 {KVF} lds", "d", after))
    else:
        it.append(Item(f"s_add_u32 m0, s{A.sWR}, s{A.cV1}", "s", after))
        it.append(Item(f"buffer_load_dwordx4 v{A.DMA}, {sr(S_V)}, s{A.sG} offen {KVF} lds", "d", after))
        it.append(Item(f"s_add_u32 m0, s{A.sWR}, s{A.cV2}", "s", after))
        it.append(Item(f"buffer_load_dwordx4 v{A.DMA}, {sr(S_V)}, s{A.sG} offen offset:128 {KVF} lds", "d", after))
        it.append(Item(f"s_add_u32 s{A.sG}, s{A.sG}, 8192", "s", after))
        it.append(Item(f"s_sub_u32 s{A.sLEFT}, s{A.sLEFT}, 1\ns_cselect_b32 s{A.sG}, {OOB}, s{A.sG}", "s", after))
        it.append(Item(f"s_add_u32 s{A.sWR}, s{A.sWR}, 16384", "s", after))
        it.append(Item(f"s_and_b32 s{A.sWR}, s{A.sWR}, {NT*16384-1}", "s", after))
        it.append(Item(f"s_cmp_eq_u32 s{A.sWR}, {(NT-1)*16384}\ns_cselect_b32 s{A.sDL}, s{A.sPH}, 16384", "s", after, cost=2))
    return it


def a_kread(dst, i):
    u, s_ = i >> 2, i & 3
    return f"ds_read_b128 {vr(dst)}, v{A.KR1 if s_&1 else A.KR0} offset:{(s_>>1)*4096 + u*2048}"


def a_qread(e, sbase, d01, d8):
    e(f"v_lshlrev_b32 v{A.T2}, 4, v0")
    e(f"v_add_u32 v{A.T2}, s{sbase}, v{A.T2}")
    for s_ in range(4):
        e(f"ds_read_b128 {vr(d8+4*s_)}, v{A.T2} offset:{32768+1024*s_}")
    e(f"s_lshl_b32 s{A.sT2}, s{sW}, 13")
    e(f"v_add_u32 v{A.T2}, s{A.sT2}, v{A.T2}")
    for i in range(8):
        e(f"ds_read_b128 {vr(d01+4*i)}, v{A.T2} offset:{1024*i}")


def a_flagstore(e, val):
    e(f"s_lshl_b32 s{A.sT}, s{sPAIR}, 3")
    e(f"s_add_u32 s{A.sT}, s{A.sT}, s{sJ}")
    e(f"s_lshl_b32 s{A.sT}, s{A.sT}, 8")
    e(f"s_add_u32 s{A.sT}, s{A.sT}, {FLG}")
    e(f"v_mov_b32 v{A.T0}, s{A.sT}")
    e(f"v_mov_b32 v{A.T1}, {val}")
    e("s_mov_b64 exec, 1")
    e(f"buffer_store_dword v{A.T1}, v{A.T0}, {sr(S_WS)}, 0 offen sc1")
    e.vm.pop()
    e("s_mov_b64 exec, -1")


def a_signal(e):
    if "wb" not in EXP:
        a_flagstore(e, f"s{A.sGEN}")
    e(f"ds_inc_u32 v{A.FLA}, v{A.ONE} offset:{CL}")


def a_flaginit(e):
    X = A.FP
    e(f"s_lshl_b32 s{A.sT2}, s{sB}, 3")
    e(f"s_add_u32 s{A.sT2}, s{A.sT2}, s{sJ}")
    e(f"s_mul_i32 s{A.sT}, s{A.sT2}, {32*1152}")
    e(f"v_lshrrev_b32 v{A.T0}, 3, v0")
    e(f"v_and_b32 v{A.T1}, 7, v0")
    e(f"v_mul_u32_u24 v{A.T2}, 1152, v{A.T0}")
    e(f"v_lshl_add_u32 v{A.T2}, v{A.T1}, 4, v{A.T2}")
    for rg in range(4):
        e(f"buffer_load_dwordx4 {vr(X+4*rg)}, v{A.T2}, {sr(S_WO)}, s{A.sT} offen offset:1024", "pk")
        e(f"s_add_u32 s{A.sT}, s{A.sT}, {8*1152}")
    e(f"v_lshrrev_b32 v{A.T2}, 1, v{A.T1}")
    e(f"v_lshlrev_b32 v{A.T2}, 17, v{A.T2}")
    e(f"v_lshl_add_u32 v{A.T2}, v{A.T0}, 5, v{A.T2}")
    e(f"v_and_b32 v{A.T1}, 1, v{A.T1}")
    e(f"v_lshl_add_u32 v{A.T2}, v{A.T1}, 4, v{A.T2}")
    e(f"s_lshl_b32 s{A.sT}, s{A.sT2}, 10")
    e(f"s_lshl_b32 s{A.sT2}, s{sBLK}, 19")
    e(f"s_add_u32 s{A.sT}, s{A.sT}, s{A.sT2}")
    e(f"s_add_u32 s{A.sT}, s{A.sT}, {WSW}")
    e("s_waitcnt vmcnt(0)")
    for rg in range(4):
        e(f"buffer_store_dwordx4 {vr(X+4*rg)}, v{A.T2}, {sr(S_WS)}, s{A.sT} offen offset:{256*rg} sc1", "pk")
    a_flagstore(e, "0")
    e("s_waitcnt vmcnt(0)")
    e(f"s_lshl_b32 s{A.sT}, s{sBLK}, 7")
    e(f"v_mov_b32 v{A.T0}, s{A.sT}")
    e(f"v_mov_b32 v{A.T1}, 1")
    e("s_mov_b64 exec, 1")
    e(f"buffer_atomic_add v{A.T1}, v{A.T0}, {sr(S_DBG)}, 0 offen sc1")
    e("s_mov_b64 exec, -1")
    e.vm = []


def a_qstep_work(e, R, ool):
    skip = e.newlabel("qskip")
    nosig = e.newlabel("nosig")
    e(f"s_cmp_eq_u32 s{A.sGEN}, 0")
    e(f"s_cbranch_scc1 {skip}")
    e(f"s_cmp_lg_u32 s{sW}, 0")
    e(f"s_cbranch_scc1 {nosig}")
    a_signal(e)
    e.label(nosig)
    e(f"s_cmp_eq_u32 s{A.sGEN}, 3")
    e(f"s_cbranch_scc1 {skip}")
    e(f"s_mov_b32 s{A.sT}, 8")
    flag_wait(e, A.FL, A.FLA, A.sT, CQ, sleep=0)
    if R == 2:
        e(f"s_cmp_eq_u32 s{A.sGEN}, 1")
        e(f"s_mov_b32 s{A.sT}, {LDS_R2}")
        e(f"s_cselect_b32 s{A.sT}, {LDS_R1}, s{A.sT}")
        a_qread(e, A.sT, A.O + 64, A.Q + 32)
        e("s_waitcnt lgkmcnt(0)")
    e(f"ds_inc_u32 v{A.FLA}, v{A.ONE} offset:{CP}")
    e.label(skip)


sCR, sCF, sCS = 92, 98, 100


def a_spin(e):
    flag_wait(e, A.FL, A.FLA, A.sF, CA, sleep=ASLP)


def a_step(e, R, p, ool, seed=None):
    nextp = (p + 1) % 3
    Gr = lambda k: A.FP + 16 * (k % 3)
    K = [Gr(p) + 4 * i for i in range(4)] + [Gr(p + 1) + 4 * i for i in range(4)]
    V = [Gr(p + 2) + 4 * i for i in range(4)] + [Gr(p) + 4 * i for i in range(4)]
    Kn = [Gr(nextp) + 4 * i for i in range(4)] + [Gr(nextp + 1) + 4 * i for i in range(4)]
    base = 8 * R
    lastqk = 8 * (R - 1)
    lastpv = base + 9 * (R - 1)
    end = base + 9 * R
    wl = lambda tag: (lambda e: e.wait_lg(lambda t: t == tag))
    M = []
    for r in range(R):
        for idx in range(8):
            u, s = idx >> 2, idx & 3
            d = A.S + 8 * r + 4 * u
            c = vr(A.C + 4 * r) if s == 0 else vr(d)
            pre = None
            if r == 0:
                pre = wl(("k", 3)) if idx == 0 else (wl(("k", idx + 1)) if idx in (4, 6) else None)
            M.append((f"v_mfma_f32_16x16x32_bf16 {vr(d)}, {vr(K[idx])}, {vr(A.Q+16*r+4*s)}, {c}", pre))
    for r in range(R):
        for T in range(8):
            o = A.O + 32 * r + 4 * T
            pre = None
            if r == 0:
                pre = wl(("v", 3)) if T == 0 else (wl(("v", T + 1)) if T in (4, 6) else None)
            M.append((f"v_mfma_f32_16x16x32_bf16 {vr(o)}, {vr(V[T])}, {vr(A.S+8*r)}, {vr(o)}", pre))
        M.append((f"v_mfma_f32_16x16x32_bf16 {vr(A.L+4*r)}, {vr(A.ONE)}, {vr(A.S+8*r)}, {vr(A.L+4*r)}", None))

    def flagcmp(e):
        e.wait_lg(lambda t: t == "fl")
        e(f"v_cmp_gt_u32 s[{sCF}:{sCF+1}], s{A.sF}, v{A.FL}")

    QV = []
    QC = []
    QZ = []
    fc0 = Item(flagcmp, "v", base - 1)
    cpc = None
    for r in range(R):
        b = A.S + 8 * r
        e1 = 8 * r + 7 + 2
        need = base + 9 * r
        q = []
        mx = Item(f"v_max3_f32 v{A.MX}, v{b}, v{b+1}, v{b+2}\nv_max3_f32 v{A.MX}, v{A.MX}, v{b+3}, v{b+4}\n"
                  f"v_max3_f32 v{A.MX}, v{A.MX}, v{b+5}, v{b+6}\nv_max_f32 v{A.MX}, v{A.MX}, v{b+7}\n"
                  f"v_cmp_lt_f32 s[{sCR+2*r}:{sCR+2*r+1}], s{A.sTHR}, v{A.MX}", "v", e1, cost=5)
        if r == R - 1:
            QC.append(fc0)
        QC.append(mx)

        def chk(e, r=r):
            lab = e.newlabel("rare")
            back = e.newlabel("rareb")
            if r == R - 1:
                e(f"s_or_b64 s[{sCF}:{sCF+1}], s[{sCF}:{sCF+1}], s[{sCR+2*r}:{sCR+2*r+1}]")
            else:
                e(f"s_cmp_lg_u64 s[{sCR+2*r}:{sCR+2*r+1}], 0")
            e.branch(f"s_cbranch_scc1 {lab}", fence=False)
            e.label(back)

            def f(e):
                e.label(lab)
                e.hist = []
                if r == R - 1:
                    a_spin(e)
                    e(f"s_cmp_eq_u64 s[{sCR+2*r}:{sCR+2*r+1}], 0")
                    e(f"s_cbranch_scc1 {back}")
                e(f"s_call_b64 s[{sRET}:{sRET+1}], L_rare{r}")
                e(f"s_branch {back}")
            ool.append(f)
        ck = Item(chk, "b", e1, needs=mx, delay=2, cost=4)
        QC.append(ck)
        if r == R - 1:
            cpc = ck
        for i in range(8):
            q.append(Item(f"v_exp_f32 v{b+i}, v{b+i}", "t", e1, needs=ck if i == 0 else None))
            if i in (2, 4, 6):
                k = i // 2 - 1
                q.append(Item(f"v_cvt_pk_bf16_f32 v{b+k}, v{b+2*k}, v{b+2*k+1}", "v", e1))
        q.append(Item(f"v_cvt_pk_bf16_f32 v{b+3}, v{b+6}, v{b+7}", "v", e1, need - 1))
        QV.append(q)
    QL = []

    def vread(T, u, after):
        QL.append(Item(f"ds_read_b64_tr_b16 {vr(V[T]+2*u,2)}, v{A.VR0+(T&3)} offset:{8192+(T>>2)*4096+u*2048}", "l", after, base, ("v", T)))

    for T in range(4):
        vread(T, 0, T)
        vread(T, 1, T)
    for T in range(4, 8):
        vread(T, 0, lastqk + T - 4)
        vread(T, 1, lastqk + T - 4)
    fl0 = Item(f"ds_read_b32 v{A.FL}, v{A.FLA} offset:{CA}", "l", base - 4, base - 1, tag="fl")
    QL.append(fl0)
    fc0.needs, fc0.delay = fl0, 2
    rr = random.Random(seed)
    KEARLY = rr.choice([0, 1, 2, 3, 4, 6, 8])
    KDPOS = rr.choice([-6, -3, 0, 2, 4])
    KA = lastpv - KEARLY
    for i in range(4):
        QL.append(Item(a_kread(Kn[i], i), "l", KA + i, tag=("kn", i), needs=cpc, delay=1))
    for i in range(4, 8):
        QL.append(Item(a_kread(Kn[i], i), "l", lastpv + V.index(Kn[i]), tag=("kn", i)))
    fl1 = Item(f"ds_read_b32 v{A.FL}, v{A.FLA} offset:{CA}", "l", end - 6, end - 3, tag="fl")
    QL.append(fl1)
    QS = a_dma_items("v", 0)
    QS.append(Item(f"s_waitcnt vmcnt({NSTEADY})", "s", 7))
    QS.append(Item(f"ds_inc_u32 v{A.FLA}, v{A.ONE} offset:{CA}", "w", 7, base - 5, tag="flw"))
    QS.append(Item(f"s_add_u32 s{A.sF}, s{A.sF}, 4", "s", 7))
    QS.append(Item(f"v_add_u32 v{A.KR0}, s{A.sDL}, v{A.KR0}", "v", 3))
    QS.append(Item(f"v_add_u32 v{A.KR1}, s{A.sDL}, v{A.KR1}", "v", 3, base - 1))
    QS.append(Item(f"s_waitcnt vmcnt({NSTEADY-2})", "s", base + 7, needs=cpc))
    QS.append(Item(f"ds_inc_u32 v{A.FLA}, v{A.ONE} offset:{CA}", "w", base + 7, end - 7, tag="flw"))
    QS.append(Item(f"s_add_u32 s{A.sF}, s{A.sF}, 4", "s", base + 7))
    QS += a_dma_items("k", lastpv + KDPOS)
    for k in range(4):
        QZ.append(Item(f"v_add_u32 v{A.VR0+k}, s{A.sDL}, v{A.VR0+k}", "v", base))
    QS.append(Item(f"s_lshr_b32 s{A.sMK}, s{A.sMK}, 1", "s", base + 8))
    QS.append(Item(f"s_and_b32 s{sCS}, s{A.sMK}, 1", "s", base + 8))
    QS.append(Item(flagcmp, "v", end - 3, needs=fl1, delay=2))
    schedule(e, M, [QC, QL, QS] + QV + [QZ], ASLOTS, spread=True, seed=seed)
    lab = e.newlabel("cpe")
    back = e.newlabel("cpeb")
    e(f"s_or_b64 s[{sCF}:{sCF+1}], s[{sCF}:{sCF+1}], s[{sCS}:{sCS+1}]")
    e.branch(f"s_cbranch_scc1 {lab}", fence=False)
    e.label(back)

    def f(e):
        e.label(lab, full_fence=True)
        a_spin(e)
        e(f"s_cmp_eq_u32 s{sCS}, 0")
        e(f"s_cbranch_scc1 {back}")
        e(f"s_cmp_eq_u32 s{A.sMK}, 1")
        e(f"s_cbranch_scc1 L_A{R}_epi")
        e(f"s_mov_b32 s{A.sTHR}, {f32(THR)}")
        e(f"s_mov_b32 s{A.sFLOOR}, 0")
        e(f"s_cmp_lg_u32 s{A.sMK}, {(1 << (16 - QSTEP)) | 1}")
        e(f"s_cbranch_scc1 {back}")
        e(f"s_call_b64 s[{sRET}:{sRET+1}], L_qwork{R}")
        e(f"s_branch {back}")
    ool.append(f)
    e.lg = [("k", t[1]) if isinstance(t, tuple) and t[0] == "kn" else t for t in e.lg]


def a_rare(e, r):
    e.label(f"L_rare{r}", full_fence=True)
    b = A.S + 8 * r
    e("s_waitcnt lgkmcnt(0)")
    e(f"v_max3_f32 v{A.T0}, v{b}, v{b+1}, v{b+2}")
    e(f"v_max3_f32 v{A.T0}, v{A.T0}, v{b+3}, v{b+4}")
    e(f"v_max3_f32 v{A.T0}, v{A.T0}, v{b+5}, v{b+6}")
    e(f"v_max_f32 v{A.T0}, v{A.T0}, v{b+7}")
    e(f"v_mov_b32 v{A.T1}, v{A.T0}")
    e(f"v_permlane32_swap_b32 v{A.T0}, v{A.T1}")
    e(f"v_max_f32 v{A.T0}, v{A.T0}, v{A.T1}")
    e(f"v_mov_b32 v{A.T1}, v{A.T0}")
    e(f"v_permlane16_swap_b32 v{A.T0}, v{A.T1}")
    e(f"v_max_f32 v{A.T0}, v{A.T0}, v{A.T1}")
    e(f"v_max_f32 v{A.T0}, s{A.sFLOOR}, v{A.T0}")
    for i in range(8):
        e(f"v_sub_f32 v{b+i}, v{b+i}, v{A.T0}")
    for i in range(4):
        e(f"v_sub_f32 v{A.C+4*r+i}, v{A.C+4*r+i}, v{A.T0}")
    skip = e.newlabel("rfirst")
    e(f"s_cmp_lg_u32 s{A.sFLOOR}, 0")
    e(f"s_cbranch_scc1 {skip}")
    e(f"v_exp_f32 v{A.T1}, -v{A.T0}")
    for i in range(4):
        e(f"v_mul_f32 v{A.L+4*r+i}, v{A.L+4*r+i}, v{A.T1}")
    for i in range(32):
        e(f"v_mul_f32 v{A.O+32*r+i}, v{A.O+32*r+i}, v{A.T1}")
    e.label(skip)
    e(f"ds_read_b32 v{A.FL}, v{A.FLA} offset:{CA}")
    e("s_waitcnt lgkmcnt(0)")
    e.fence()
    e("s_nop 1")
    e(f"s_setpc_b64 s[{sRET}:{sRET+1}]")


def a_reset(e):
    for i in range(96):
        e(f"v_mov_b32 v{A.O+i}, 0")
    for i in range(24):
        e(f"v_mov_b32 v{A.L+i}, 0")
    e(f"s_mov_b32 s{A.sTHR}, 0xff800000")
    e(f"s_mov_b32 s{A.sFLOOR}, 0xff800000")
    e(f"s_mov_b32 s{A.sMK}, {(1 << 16) | (1 << QSTEP) | 2}")


def a_epilogue(e, R):
    if R == 3:
        e(f"s_cmp_eq_u32 s{A.sGEN}, 0")
        e(f"s_mov_b32 s{A.sT}, {LDS_QT2}")
        e(f"s_cselect_b32 s{A.sT}, {LDS_QT1}, s{A.sT}")
        e(f"s_cmp_eq_u32 s{A.sGEN}, 2")
        e(f"s_cselect_b32 s{A.sT}, {LDS_R2+16384}, s{A.sT}")
        e(f"v_lshlrev_b32 v{A.T2}, 4, v0")
        e(f"v_add_u32 v{A.T2}, s{A.sT}, v{A.T2}")
        for i in range(8):
            e(f"ds_read_b128 {vr(A.Q+4*i)}, v{A.T2} offset:{1024*i}", "qn")
    e(f"v_lshlrev_b32 v{A.T2}, 4, v0")
    for r in range(R):
        e(f"v_rcp_f32 v{A.T0}, v{A.L+4*r}")
        if r < 2:
            e(f"s_lshl_b32 s{A.sT}, s{sW}, 11")
            e(f"s_add_u32 s{A.sT}, s{A.sT}, s{A.sOOFF}")
            if r == 1:
                e(f"s_add_u32 s{A.sT}, s{A.sT}, 1024")
        else:
            e(f"s_add_u32 s{A.sT}, s{A.sOOFF}, 8192")
        for s in range(4):
            o = A.O + 32 * r + 8 * s
            for i in range(8):
                e(f"v_mul_f32 v{o+i}, v{o+i}, v{A.T0}")
            for i in range(4):
                e(f"v_cvt_pk_bf16_f32 v{o+i}, v{o+2*i}, v{o+2*i+1}")
            e(f"buffer_store_dwordx4 {vr(o)}, v{A.T2}, {sr(S_WS)}, s{A.sT} offen {'' if 'wb' in EXP else 'sc1'}", "ost")
            if s < 3:
                e(f"s_add_u32 s{A.sT}, s{A.sT}, 9216")
    e(f"s_add_u32 s{A.sOOFF}, s{A.sOOFF}, 36864")


def gen_A(e):
    ool = []
    if "noprio" not in EXP:
        e("s_setprio 2")
    e.raw("    s_getpc_b64 s[4:5]")
    e.raw("L_pc0:")
    e.raw(f"    s_sub_u32 s4, s4, L_pc0-{NAME}_kernel")
    e.raw(f"    s_subb_u32 s5, s5, 0")
    e(f"v_lshlrev_b32 v{A.T2}, 7, v0")
    e(f"s_lshl_b32 s{A.sT}, s{sW}, 13")
    e(f"v_add_u32 v{A.T2}, s{A.sT}, v{A.T2}")
    e.raw(f"    v_min_u32 v{A.T2}, L_end-{NAME}_kernel, v{A.T2}")
    e.raw(f"    global_load_dword v{A.S}, v{A.T2}, s[4:5]")
    e(f"v_lshrrev_b32 v{A.T1}, 4, v0")
    e(f"v_lshlrev_b32 v{A.T2}, 1, v{A.T1}")
    e(f"v_and_b32 v{A.T0}, 7, v0")
    e(f"v_xor_b32 v{A.T0}, v{A.T0}, v{A.T2}")
    e(f"v_lshrrev_b32 v{A.T2}, 3, v0")
    e(f"v_lshlrev_b32 v{A.DMA}, 8, v{A.T2}")
    e(f"v_lshl_add_u32 v{A.DMA}, v{A.T0}, 4, v{A.DMA}")
    e(f"v_and_b32 v{A.T0}, 15, v0")
    e(f"v_and_b32 v{A.T2}, 6, v0")
    e(f"v_xor_b32 v{A.T2}, v{A.T2}, v{A.T1}")
    e(f"v_lshlrev_b32 v{A.KR0}, 7, v{A.T0}")
    e(f"v_lshl_add_u32 v{A.KR0}, v{A.T2}, 4, v{A.KR0}")
    e(f"v_xor_b32 v{A.KR1}, 64, v{A.KR0}")
    e(f"v_lshrrev_b32 v{A.T0}, 2, v0")
    e(f"v_lshlrev_b32 v{A.VR0}, 7, v{A.T0}")
    e(f"v_bfe_u32 v{A.T2}, v0, 3, 2")
    e(f"v_lshl_add_u32 v{A.VR0}, v{A.T2}, 5, v{A.VR0}")
    e(f"v_and_b32 v{A.T2}, 3, v0")
    e(f"v_lshl_add_u32 v{A.VR0}, v{A.T2}, 3, v{A.VR0}")
    for k in range(1, 4):
        e(f"v_xor_b32 v{A.VR0+k}, {32*k}, v{A.VR0}")
    e(f"v_lshlrev_b32 v{A.FLA}, 2, v0")
    e(f"v_add_u32 v{A.FLA}, {LDS_FL}, v{A.FLA}")
    for k in range(4):
        e(f"v_mov_b32 v{A.ONE+k}, 0x3f803f80")
    e(f"s_lshl_b32 s{A.cK1}, s{sW}, 10")
    e(f"s_add_u32 s{A.cK2}, s{A.cK1}, {4096-128}")
    e(f"s_add_u32 s{A.cV1}, s{A.cK1}, 8192")
    e(f"s_add_u32 s{A.cV2}, s{A.cK2}, 8192")
    e(f"s_lshl_b32 s{A.sG}, s{sB}, 3")
    e(f"s_add_u32 s{A.sG}, s{A.sG}, s{sJ}")
    e(f"s_lshl_b32 s{A.sG}, s{A.sG}, 19")
    e(f"s_lshl_b32 s{A.sT}, s{sW}, 11")
    e(f"s_add_u32 s{A.sG}, s{A.sG}, s{A.sT}")
    e(f"s_mov_b32 s{A.sPH}, {(-(NT-1)*16384) & 0xffffffff}")
    e(f"s_lshl_b32 s{A.sT}, s{sPAIR}, 3")
    e(f"s_add_u32 s{A.sT}, s{A.sT}, s{sJ}")
    e(f"s_mul_i32 s{A.sOOFF}, s{A.sT}, {4*36864}")
    e(f"s_mov_b32 s{A.sWR}, 0")
    e(f"s_mov_b32 s{A.sGEN}, 0")
    e(f"s_mov_b32 s{A.sLEFT}, 63")
    e(f"s_mov_b32 s{sCS+1}, 0")
    a_reset(e)
    lab = e.newlabel("noinit")
    e(f"s_cmp_lg_u32 s{sW}, 0")
    e(f"s_cbranch_scc1 {lab}")
    a_flaginit(e)
    e.label(lab)
    e(f"s_mov_b32 s{A.sT}, {4*KVAT}")
    flag_wait(e, A.FL, A.FLA, A.sT, CG, sleep=2)
    for t in range(NT):
        for it in a_dma_items("k", 0):
            it.emit(e)
        e(f"s_waitcnt vmcnt({KVW})")
        if t < NT - 1:
            for it in a_dma_items("v", 0):
                it.emit(e)
            e(f"s_waitcnt vmcnt({KVW})")
    e(f"s_mov_b32 s{A.sT}, 4")
    flag_wait(e, A.FL, A.FLA, A.sT, CQ, sleep=1)
    ts(e, A.T0, A.T1, True)
    e(f"s_mov_b32 s{A.sT}, {LDS_R1}")
    a_qread(e, A.sT, A.Q, A.Q + 32)
    lab = e.newlabel("q1skip")
    e(f"s_cmp_eq_u32 s{sW}, 0")
    e(f"s_cbranch_scc1 {lab}")
    e(f"s_mov_b32 s{A.sT}, {LDS_R2}")
    a_qread(e, A.sT, A.O + 64, A.Q + 32)
    e.label(lab)
    e("s_waitcnt lgkmcnt(0)")
    e(f"ds_inc_u32 v{A.FLA}, v{A.ONE} offset:{CP}")
    e(f"s_waitcnt vmcnt({NSTEADY})")
    e.lg, e.vm = [], []
    e(f"s_mov_b32 s{A.sF}, 4")
    e(f"ds_inc_u32 v{A.FLA}, v{A.ONE} offset:{CA}")
    flag_wait(e, A.FL, A.FLA, A.sF, CA, sleep=0)
    for i in range(8):
        e(a_kread(A.FP + 4 * i, i), ("k", i))
    e("s_waitcnt lgkmcnt(0)")
    e(f"s_cmp_eq_u32 s{sW}, 0")
    e.branch("s_cbranch_scc1 L_A3_0")
    for R in (2, 3):
        e.raw(".p2align 6")
        c, seed = best_seed(lambda t, sd: a_step(t, R, 0, [], sd), [("k", i) for i in range(8)], TRIALS)
        print(f"A R={R}: est {c} seed {seed}", file=sys.stderr)
        for p in range(3):
            e.label(f"L_A{R}_{p}")
            if p == 0:
                e.hist = []
            e.lg = [("k", i) for i in range(8)]
            if "hprio" in EXP:
                e(f"s_setprio {3 if R == 3 else 0}")
            e.inA = True
            a_step(e, R, p, ool, seed)
            e.inA = False
        e.branch(f"s_branch L_A{R}_0")
        e.label(f"L_A{R}_epi", full_fence=True)
        ts(e, A.T0, A.T1, True)
        a_epilogue(e, R)
        e(f"s_add_u32 s{A.sGEN}, s{A.sGEN}, 1")
        e(f"s_cmp_eq_u32 s{A.sGEN}, 4")
        e.branch("s_cbranch_scc1 L_A_end")
        if R == 2:
            for i in range(32):
                e(f"v_mov_b32 v{A.Q+i}, v{A.O+64+i}")
        a_reset(e)
        e("s_waitcnt lgkmcnt(0)")
        ts(e, A.T0, A.T1)
        e.fence()
        if R == 2:
            for g in (1, 2, 3):
                nx = e.newlabel("nx")
                e(f"s_cmp_lg_u32 s{A.sGEN}, {g}")
                e(f"s_cbranch_scc1 {nx}")
                e(f"s_cmp_eq_u32 s{sW}, {g}")
                e(f"s_cbranch_scc1 L_A3_{g%3}")
                e(f"s_branch L_A2_{g%3}")
                e.label(nx)
        else:
            for g in (1, 2):
                e(f"s_cmp_eq_u32 s{A.sGEN}, {g}")
                e(f"s_cbranch_scc1 L_A2_{g%3}")
            e(f"s_branch L_A2_0")
    e.label("L_A_end")
    e.hist = []
    e("s_waitcnt vmcnt(0) lgkmcnt(0)")
    e(f"s_add_u32 s{A.sF}, s{A.sF}, 4")
    e(f"ds_inc_u32 v{A.FLA}, v{A.ONE} offset:{CA}")
    ts(e, A.T0, A.T1)
    e(f"s_cmp_lg_u32 s{sW}, 0")
    e("s_cbranch_scc1 L_bail")
    flag_wait(e, A.FL, A.FLA, A.sF, CA, sleep=0)
    e.vm = []
    a_signal(e)
    e.branch("s_branch L_bail")
    k = 0
    while k < len(ool):
        ool[k](e)
        k += 1
    for r in range(3):
        a_rare(e, r)
    for R in (2, 3):
        e.label(f"L_qwork{R}", full_fence=True)
        e.lg = []
        a_qstep_work(e, R, ool)
        e.fence()
        e(f"s_setpc_b64 s[{sRET}:{sRET+1}]")


class G:
    T0, T1, T2 = 1, 2, 3
    FLA, BIG, FL = 4, 5, 7
    XDMA, WD0, WD1, WB, XR0, XR1, QST, XB0 = 8, 9, 10, 11, 15, 16, 17, 18
    B = 20
    AF = 56
    ACC = 88
    LB1, LB1b, LB2, ODMA, ODMA5, OB, O5 = 4, 5, 6, 7, 8, 9, 13
    OBF = 16
    OAF = 52
    OACC = 92
    sF, sX, sWq, sTASK, sQOFF, sT, sT2, sSC, sXB, sXW, sXR, sKX, sCNT, cX, cW, sT3 = range(70, 86)
    sEX = 86
    sNX, sNW, sW0, sWE, sR0 = 92, 93, 94, 95, 96
    sTB = 6
    sO, sWo, sLB, sE, sP, sSH = 71, 72, 74, 77, 78, 79


def g_dma_x_items(tag, after=-1):
    I = lambda t, k, tg=None: Item(t, k, after, tag=tg)
    out = [I(f"s_add_u32 m0, s{G.sXW}, s{G.cX}", "s"), I(f"s_add_u32 s{G.sT}, s{G.sX}, s{G.sKX}", "s")]
    for k in range(4):
        if k:
            out.append(I(f"s_add_u32 m0, m0, 1024", "s"))
            out.append(I(f"s_add_u32 s{G.sT}, s{G.sT}, {8*1152}", "s"))
        out.append(I(f"buffer_load_dwordx4 v{G.XDMA}, {sr(S_X)}, s{G.sT} offen lds", "d", tag))
    out += [
        I(f"s_add_u32 m0, s{G.sXW}, s{G.sT2}", "s"),
        I(f"s_add_u32 s{G.sT}, s{G.sXB}, s{G.sKX}", "s"),
        I(f"s_mov_b64 exec, s[{G.sEX}:{G.sEX+1}]\nbuffer_load_dwordx4 v{G.XDMA}, {sr(S_X)}, s{G.sT} offen lds\ns_mov_b64 exec, -1", "d", tag),
        I(f"s_add_u32 s{G.sKX}, s{G.sKX}, 128", "s"),
        I(f"s_cmp_eq_u32 s{G.sKX}, {9*128}\ns_cselect_b32 s{G.sKX}, 0, s{G.sKX}", "s"),
        I(f"s_sub_u32 s{G.sNX}, s{G.sNX}, 1\ns_cselect_b32 s{G.sKX}, {OOB}, s{G.sKX}\ns_cselect_b32 s{G.cX}, 0x18000, s{G.cX}\ns_cselect_b32 s{G.sT2}, 0x18000, s{G.sT2}", "s"),
        I(f"s_add_u32 s{G.sXW}, s{G.sXW}, {XST}", "s"),
        I(f"s_cmp_eq_u32 s{G.sXW}, {LDS_X + NX*XST}\ns_cselect_b32 s{G.sXW}, {LDS_X}, s{G.sXW}", "s"),
    ]
    return out


def g_dma_w_items(par, tag, after=-1):
    I = lambda t, k, tg=None: Item(t, k, after, tag=tg)
    out = []
    for rg in range(4):
        out.append(I(f"s_add_u32 m0, s{G.cW}, {par*4096 + rg*1024}", "s"))
        out.append(I(f"buffer_load_dwordx4 v{G.WD1 if rg&1 else G.WD0}, {sr(S_WQ)}, s{G.sWq} offen lds", "d", tag))
        out.append(I(f"s_add_u32 s{G.sWq}, s{G.sWq}, {8*8192}", "s"))
    out.append(I(f"s_cmp_eq_u32 s{G.sWq}, s{G.sWE}\ns_cselect_b32 s{G.sWq}, s{G.sW0}, s{G.sWq}", "s"))
    out.append(I(f"s_sub_u32 s{G.sNW}, s{G.sNW}, 1\ns_cselect_b32 s{G.sWq}, {OOB}, s{G.sWq}\ns_cselect_b32 s{G.cW}, 0x30000, s{G.cW}", "s"))
    return out


def g_reads_A(par):
    return [f"ds_read_b64_tr_b16 {vr(G.AF + 16*par + 4*j + 2*hh, 2)}, v{G.WB+j} offset:{par*4096 + hh*512}"
            for j in range(4) for hh in range(2)]


def g_read_B(i, s1):
    if "noB" in EXP:
        return f"ds_read_b32 v{G.B+4*i}, v{G.XR1 if s1 else G.XR0} offset:{i*2048}"
    return f"ds_read_b128 {vr(G.B+4*i)}, v{G.XR1 if s1 else G.XR0} offset:{i*2048}"


def g_arrive(e):
    e(f"s_add_u32 s{G.sF}, s{G.sF}, 4")
    e(f"ds_inc_u32 v{G.FLA}, v{G.BIG} offset:{CG}", "flw")


def g_step(e, par, ool):
    M = []
    for i in range(9):
        for j in range(4):
            d = G.ACC + 16 * i + 4 * j
            pre = None
            if j == 0:
                pre = (lambda e, i=i: e.wait_lg(lambda t: t == ("a", 0) or t == ("b", 0, i)))
            M.append((f"v_mfma_f32_16x16x32_bf16 {vr(d)}, {vr(G.AF + 16*par + 4*j)}, {vr(G.B+4*i)}, {vr(d)}", pre))
    QB = []
    if par == 1:
        QB += [Item(f"s_add_u32 s{G.sXR}, s{G.sXR}, {XST}", "s", -1, 3),
               Item(f"s_cmp_eq_u32 s{G.sXR}, {LDS_X + NX*XST}\ns_cselect_b32 s{G.sXR}, {LDS_X}, s{G.sXR}", "s", -1, 3),
               Item(f"v_add_u32 v{G.XR0}, s{G.sXR}, v{G.XB0}", "v", -1, 3),
               Item(f"v_xor_b32 v{G.XR1}, 64, v{G.XR0}", "v", -1, 3)]
    QB += [Item(g_read_B(i, par ^ 1), "l", 4 * i + 3, tag=("b", 1, i)) for i in range(9)]
    def wv(e):
        if TS == 3:
            e("s_memtime s[14:15]")
        e.wait_vm(lambda t: t == ("w", 1))
        if TS == 3:
            e("s_memtime s[16:17]")
            e("s_waitcnt lgkmcnt(0)")
            e("s_sub_u32 s16, s16, s14")
            e("s_add_u32 s18, s18, s16")
    QA = [Item(wv, "s", 0)]
    QA += [Item(x, "l", 0, tag=("a", 1)) for x in g_reads_A(par ^ 1)]
    QA += [Item(lambda e: e.wait_lg(lambda t: t == ("a", 1)), "s", 14)]
    QA += g_dma_w_items(par ^ 1, ("w", 3), 14)
    if par == 1:
        w0 = Item(lambda e: e.wait_lg(lambda t: isinstance(t, tuple) and t[0] == "b" and t[1] == 0), "s", 5)
    else:
        w0 = Item(lambda e: e.wait_vm(lambda t: t == ("x", 1)), "s", 5)
    flr = Item(f"ds_read_b32 v{G.FL}, v{G.FLA} offset:{CG}", "l", 18 if par else 25, 21 if par else 28, tag="fl")

    def fcmp(e):
        e.wait_lg(lambda t: t == "fl")
        e(f"v_cmp_gt_u32 vcc, s{G.sF}, v{G.FL}")

    def fbr(e):
        lab = e.newlabel("spin")
        back = e.newlabel("spinb")
        e.branch(f"s_cbranch_vccnz {lab}", fence=False)
        e.label(back)

        def f(e):
            e.label(lab)
            e.hist = []
            flag_wait(e, G.FL, G.FLA, G.sF, CG, sleep=GSLP)
            e(f"s_branch {back}")
        ool.append(f)
    fc = Item(fcmp, "v", 0, needs=flr, delay=3)
    QS = [w0,
          Item(f"ds_inc_u32 v{G.FLA}, v{G.BIG} offset:{CG}", "w", 5, 12, tag="flw"),
          Item(f"s_add_u32 s{G.sF}, s{G.sF}, 4", "s", 5),
          flr, fc]
    QA += [Item(fbr, "b", 0, needs=fc, delay=2)]
    if par == 1:
        QA += g_dma_x_items(("x", 3), 0)
    schedule(e, M, [QS, QB, QA])

    def dec(t):
        if not isinstance(t, tuple):
            return t
        if t[0] == "x" and par == 0:
            return t
        return (t[0], t[1] - 1) + tuple(t[2:])
    e.vm = [dec(t) for t in e.vm]
    e.lg = [dec(t) for t in e.lg]


def o_tiles():
    return [(i, j) for i in range(9) for j in range(5) if j < 4 or i < 5]


OSTB = 5120


def gen_G(e):
    ool = []
    e(f"v_lshrrev_b32 v{G.T1}, 4, v0")
    e(f"v_and_b32 v{G.T0}, 7, v0")
    e(f"v_lshrrev_b32 v{G.T2}, 3, v0")
    e(f"v_lshlrev_b32 v{G.FL}, 1, v{G.T1}")
    e(f"v_xor_b32 v{G.FL}, v{G.FL}, v{G.T0}")
    e(f"v_mul_u32_u24 v{G.XDMA}, 1152, v{G.T2}")
    e(f"v_lshl_add_u32 v{G.XDMA}, v{G.FL}, 4, v{G.XDMA}")
    e(f"v_and_b32 v{G.FL}, 1, v{G.T1}")
    e(f"v_lshlrev_b32 v{G.FL}, 1, v{G.FL}")
    e(f"v_xor_b32 v{G.FL}, v{G.FL}, v{G.T0}")
    e(f"v_lshlrev_b32 v{G.WD0}, 13, v{G.T2}")
    e(f"v_lshl_add_u32 v{G.WD0}, v{G.FL}, 4, v{G.WD0}")
    e(f"v_xor_b32 v{G.WD1}, 64, v{G.WD0}")
    e(f"s_mul_i32 s{G.sXB}, s{sB}, 165888")
    e(f"s_mul_i32 s{G.sX}, s{sW}, {32*1152}")
    e(f"s_add_u32 s{G.sX}, s{G.sX}, s{G.sXB}")
    e(f"s_lshr_b32 s{G.sT}, s{sW}, 1")
    e(f"s_mul_i32 s{G.sT}, s{G.sT}, {8*1152}")
    e(f"s_add_u32 s{G.sXB}, s{G.sXB}, s{G.sT}")
    e(f"s_add_u32 s{G.sXB}, s{G.sXB}, {128*1152}")
    e(f"s_lshl_b32 s{G.sW0}, s{sJ}, 10")
    e(f"s_lshl_b32 s{G.sT}, s{sW}, 7")
    e(f"s_add_u32 s{G.sW0}, s{G.sW0}, s{G.sT}")
    e(f"s_and_b32 s{G.sR0}, s{sPAIR}, 3")
    e(f"s_lshl_b32 s{G.sR0}, s{G.sR0}, 1")
    e(f"s_add_u32 s{G.sR0}, s{G.sR0}, s{sJ}")
    if "norot" in EXP:
        e(f"s_mov_b32 s{G.sR0}, 0")
    e(f"s_and_b32 s{G.sT}, s{sW}, 1")
    e(f"s_cmp_eq_u32 s{G.sT}, 0")
    e(f"s_cselect_b32 s{G.sEX}, -1, 0")
    e(f"s_cselect_b32 s{G.sEX+1}, 0, -1")
    e(f"s_mov_b32 s{G.sTASK}, 0")
    e(f"s_mov_b32 s{G.sF}, 0")
    e.label("L_G_task")
    e(f"s_lshl_b32 s{G.cW}, s{sW}, 13")
    e(f"s_add_u32 s{G.cW}, s{G.cW}, {LDS_W}")
    e(f"s_lshl_b32 s{G.cX}, s{sW}, 12")
    e(f"s_mov_b32 s{G.sXW}, {LDS_X}")
    e(f"s_mov_b32 s{G.sXR}, {LDS_X}")
    e(f"s_sub_u32 s{G.sT}, s{G.sR0}, 9")
    e(f"s_cselect_b32 s{G.sT}, s{G.sR0}, s{G.sT}")
    e(f"s_lshl_b32 s{G.sKX}, s{G.sT}, 7")
    e(f"s_lshl_b32 s{G.sWq}, s{G.sT}, 19")
    e(f"s_add_u32 s{G.sWq}, s{G.sWq}, s{G.sW0}")
    e(f"s_add_u32 s{G.sWE}, s{G.sW0}, {576*8192}")
    e(f"s_mov_b32 s{G.sNX}, 8")
    e(f"s_mov_b32 s{G.sNW}, 17")
    e(f"s_lshr_b32 s{G.sT2}, s{sW}, 1")
    e(f"s_lshl_b32 s{G.sT2}, s{G.sT2}, 10")
    e(f"s_add_u32 s{G.sT2}, s{G.sT2}, 16384")
    e.vm, e.lg = [], []
    run = lambda items: [it.emit(e) for it in items]
    run(g_dma_w_items(0, ("w", 0)))
    run(g_dma_x_items(("x", 0)))
    e(f"v_and_b32 v{G.T0}, 15, v0")
    e(f"v_lshrrev_b32 v{G.T1}, 4, v0")
    e(f"v_lshlrev_b32 v{G.QST}, 4, v{G.T0}")
    e(f"v_lshrrev_b32 v{G.T2}, 1, v{G.T1}")
    e(f"v_lshl_add_u32 v{G.QST}, v{G.T2}, 8, v{G.QST}")
    e(f"v_and_b32 v{G.T2}, 1, v{G.T1}")
    e(f"v_lshl_add_u32 v{G.QST}, v{G.T2}, 3, v{G.QST}")
    e(f"v_and_b32 v{G.FL}, 6, v0")
    e(f"v_xor_b32 v{G.FL}, v{G.FL}, v{G.T1}")
    e(f"v_lshlrev_b32 v{G.XB0}, 7, v{G.T0}")
    e(f"v_lshl_add_u32 v{G.XB0}, v{G.FL}, 4, v{G.XB0}")
    e(f"v_lshlrev_b32 v{G.WB}, 10, v{G.T1}")
    e(f"v_bfe_u32 v{G.T0}, v0, 2, 2")
    e(f"v_lshl_add_u32 v{G.WB}, v{G.T0}, 7, v{G.WB}")
    e(f"v_bfe_u32 v{G.T0}, v0, 3, 2")
    e(f"v_lshl_add_u32 v{G.WB}, v{G.T0}, 5, v{G.WB}")
    e(f"v_and_b32 v{G.T0}, 3, v0")
    e(f"v_lshl_add_u32 v{G.WB}, v{G.T0}, 3, v{G.WB}")
    for k in range(1, 4):
        e(f"v_xor_b32 v{G.WB+k}, {32*k}, v{G.WB}")
    for k in range(4):
        e(f"v_add_u32 v{G.WB+k}, s{G.cW}, v{G.WB+k}")
    e(f"v_lshlrev_b32 v{G.FLA}, 2, v0")
    e(f"v_add_u32 v{G.FLA}, {LDS_FL}, v{G.FLA}")
    e(f"v_mov_b32 v{G.BIG}, 0x7fffffff")
    e(f"s_lshr_b32 s{G.sT}, s{sW}, 1")
    e(f"s_mul_i32 s{G.sQOFF}, s{G.sT}, 36864")
    e(f"s_add_u32 s{G.sQOFF}, s{G.sQOFF}, {LDS_R1}")
    e(f"s_and_b32 s{G.sT}, s{sW}, 1")
    e(f"s_lshl_b32 s{G.sT}, s{G.sT}, 11")
    e(f"v_add_u32 v{G.QST}, s{G.sT}, v{G.QST}")
    e(f"s_mov_b32 s{G.sSC}, {f32(math.log2(math.e) / math.sqrt(128.0))}")
    e(f"v_add_u32 v{G.XR0}, s{G.sXR}, v{G.XB0}")
    e(f"v_xor_b32 v{G.XR1}, 64, v{G.XR0}")
    for i in range(144):
        e(f"v_mov_b32 v{G.ACC+i}, 0")
    run(g_dma_x_items(("x", 1)))
    run(g_dma_w_items(1, ("w", 1)))
    ts(e, G.T0, G.T1)
    e.wait_vm(lambda t: t in (("x", 0), ("w", 0)))
    ts(e, G.T0, G.T1)
    g_arrive(e)
    for x in g_reads_A(0):
        e(x, ("a", 0))
    flag_wait(e, G.FL, G.FLA, G.sF, CG, sleep=0)
    for i in range(9):
        e(g_read_B(i, 0), ("b", 0, i))
    run(g_dma_w_items(0, ("w", 2)))
    run(g_dma_x_items(("x", 2)))
    e("s_waitcnt lgkmcnt(0)")
    e.fence()
    e(f"s_mov_b32 s{G.sCNT}, 9")
    e.raw(".p2align 6")
    e.label("L_G_loop")
    if "gts" in EXP:
        ts(e, G.T0, G.T1)
    vm0 = [("x", 1)] * 5 + [("w", 1)] * 4 + [("w", 2)] * 4 + [("x", 2)] * 5
    e.vm = list(vm0)
    e.lg = [("a", 0)] * 8 + [("b", 0, i) for i in range(9)]
    e.throttle = GTHQ
    e.nodma = "s[44:47]" if "noW" in EXP else ("s[32:35]" if "noX" in EXP else ("buffer" if "noD" in EXP else ""))
    g_step(e, 0, ool)
    g_step(e, 1, ool)
    e.nodma = ""
    e.throttle = 0
    assert e.vm == vm0[-len(e.vm):], e.vm
    e(f"s_sub_u32 s{G.sCNT}, s{G.sCNT}, 1")
    e(f"s_cmp_lg_u32 s{G.sCNT}, 0")
    e.branch("s_cbranch_scc1 L_G_loop")
    ts(e, G.T0, G.T1, True)
    e("s_waitcnt lgkmcnt(0)")
    e.vm, e.lg = [], []
    g_arrive(e)
    e(f"v_add_u32 v{G.T0}, s{G.sQOFF}, v{G.QST}")
    e(f"s_lshr_b32 s{G.sT2}, s{sW}, 1")
    e(f"s_add_u32 s{G.sT2}, s{G.sT2}, s{G.sTASK}")
    e(f"s_cmp_eq_u32 s{G.sT2}, 1")
    e(f"s_cselect_b32 s{G.sT}, {LDS_QT1}, s{G.sQOFF}")
    e(f"v_add_u32 v{G.T1}, s{G.sT}, v{G.QST}")
    e(f"s_cmp_eq_u32 s{G.sT2}, 2")
    e(f"s_cselect_b32 s{G.sT}, {LDS_QT2-8192}, s{G.sQOFF}")
    e(f"v_add_u32 v{G.T2}, s{G.sT}, v{G.QST}")

    def qpack(i, j):
        d = G.ACC + 16 * i + 4 * j
        if "pkmul" in EXP:
            for k in (0, 2):
                e(f"v_pk_mul_f32 {vr(d+k,2)}, {vr(d+k,2)}, {vr(G.B,2)}")
        else:
            for k in range(4):
                e(f"v_mul_f32 v{d+k}, s{G.sSC}, v{d+k}")
        e(f"v_cvt_pk_bf16_f32 v{d}, v{d}, v{d+1}")
        e(f"v_cvt_pk_bf16_f32 v{d+1}, v{d+2}, v{d+3}")

    def qwrite(i, j):
        d = G.ACC + 16 * i + 4 * j
        b = G.T1 if i < 2 else (G.T2 if i < 4 else G.T0)
        e(f"ds_write_b64 v{b}, {vr(d,2)} offset:{4096*i + 512*j}")
    tl = [(i, j) for i in range(9) for j in range(4)]
    e(f"v_mov_b32 v{G.B}, s{G.sSC}")
    e(f"v_mov_b32 v{G.B+1}, s{G.sSC}")
    for t in tl[:6]:
        qpack(*t)
    flag_wait(e, G.FL, G.FLA, G.sF, CG, sleep=0)
    for n, t in enumerate(tl):
        qwrite(*t)
        if n + 6 < len(tl):
            qpack(*tl[n + 6])
    e(f"s_add_u32 s{G.sTASK}, s{G.sTASK}, 2")
    e("s_waitcnt lgkmcnt(0)")
    e.lg = []
    e(f"ds_inc_u32 v{G.FLA}, v{G.BIG} offset:{CQ}")
    ts(e, G.T0, G.T1)
    e(f"s_mov_b32 s{G.sT2}, 4")
    flag_wait(e, G.FL, G.FLA, G.sT2, CP, sleep=1)
    e(f"s_add_u32 s{G.sW0}, s{G.sW0}, 512")
    e(f"s_cmp_lt_u32 s{G.sTASK}, 4")
    e.branch("s_cbranch_scc1 L_G_task")

    tiles = o_tiles()
    acc = {t: G.OACC + 4 * k for k, t in enumerate(tiles)}
    e(f"s_lshr_b32 s{G.sP}, s{sJ}, 1")
    e(f"s_and_b32 s{G.sE}, s{sJ}, 1")
    e(f"v_lshlrev_b32 v{G.T0}, 4, v0")
    e(f"s_lshl_b32 s{G.sT}, s{G.sE}, 12")
    e(f"v_add_u32 v{G.LB1}, s{G.sT}, v{G.T0}")
    e(f"v_add_u32 v{G.LB1b}, 4096, v{G.LB1}")
    e(f"s_cmp_eq_u32 s{G.sE}, 0")
    e(f"s_cselect_b32 s{G.sT}, 5120, 0")
    e(f"v_add_u32 v{G.LB2}, s{G.sT}, v{G.T0}")
    e(f"v_lshrrev_b32 v{G.T1}, 4, v0")
    e(f"v_lshlrev_b32 v{G.T1}, 1, v{G.T1}")
    e(f"v_and_b32 v{G.T0}, 7, v0")
    e(f"v_xor_b32 v{G.T0}, v{G.T0}, v{G.T1}")
    e(f"v_lshrrev_b32 v{G.T2}, 3, v0")
    e(f"v_mul_u32_u24 v{G.ODMA}, 1152, v{G.T2}")
    e(f"v_lshl_add_u32 v{G.ODMA}, v{G.T0}, 4, v{G.ODMA}")
    e(f"s_lshl_b32 s{G.sT}, s{sJ}, 7")
    e(f"v_add_u32 v{G.ODMA}, s{G.sT}, v{G.ODMA}")
    e(f"v_lshlrev_b32 v{G.ODMA5}, 4, v0")
    e(f"s_lshl_b32 s{G.sT}, s{sBLK}, 2")
    e(f"s_add_u32 s{G.sT}, s{G.sT}, s{G.sP}")
    e(f"s_lshl_b32 s{G.sT}, s{G.sT}, 17")
    e(f"s_add_u32 s{G.sT}, s{G.sT}, {WSW}")
    e(f"v_add_u32 v{G.ODMA5}, s{G.sT}, v{G.ODMA5}")
    e(f"s_mov_b32 s97, 0x1c71c71d")
    e(f"s_mul_i32 s{G.sLB}, s{sW}, 11264")
    e(f"s_add_u32 s{G.sLB}, s{G.sLB}, {LDS_OST}")
    e(f"v_lshrrev_b32 v{G.T0}, 2, v0")
    e(f"v_lshlrev_b32 v{G.OB}, 7, v{G.T0}")
    e(f"v_bfe_u32 v{G.T2}, v0, 3, 2")
    e(f"v_lshl_add_u32 v{G.OB}, v{G.T2}, 5, v{G.OB}")
    e(f"v_and_b32 v{G.T2}, 3, v0")
    e(f"v_lshl_add_u32 v{G.OB}, v{G.T2}, 3, v{G.OB}")
    for k in range(1, 4):
        e(f"v_xor_b32 v{G.OB+k}, {32*k}, v{G.OB}")
    for k in range(4):
        e(f"v_add_u32 v{G.OB+k}, s{G.sLB}, v{G.OB+k}")
    e(f"v_lshlrev_b32 v{G.O5}, 3, v0")
    e(f"v_add_u32 v{G.O5}, s{G.sLB}, v{G.O5}")
    e(f"s_lshl_b32 s{G.sT}, s{sPAIR}, 2")
    e(f"s_add_u32 s{G.sT}, s{G.sT}, s{sW}")
    e(f"s_mul_i32 s{G.sO}, s{G.sT}, {8*36864}")
    e(f"s_mul_i32 s{G.sWo}, s{sW}, {8*147456}")
    e(f"s_and_b32 s{G.sSH}, s{sW}, 1")
    e(f"s_lshl_b32 s{G.sSH}, s{G.sSH}, 4")
    e(f"s_mov_b32 s{G.sTASK}, 0")
    for q in range(8):
        e(f"s_add_u32 s{G.sT}, s{G.sR0}, {q}")
        e(f"s_and_b32 s{G.sT2}, s{G.sT}, 3")
        e(f"s_mul_i32 s{G.sTB+q}, s{G.sT2}, 9216")
        e(f"s_bitcmp1_b32 s{G.sT}, 2")
        e(f"s_cselect_b32 s{G.sT}, 147456, 0")
        e(f"s_add_u32 s{G.sTB+q}, s{G.sTB+q}, s{G.sT}")

    def woff(q):
        g, q = divmod(q, 8)
        return g * 147456 + (q >> 2) * 4 * 147456 + (q & 3) * 36864

    def boff(q):
        return (q >> 2) * 4 * 36864 + (q & 3) * 9216

    def dmaW(q, tag, after=-1):
        b = (q & 1) * OSTB
        I = lambda t, k, tg=None: Item(t, k, after, tag=tg)
        out = [I(f"s_lshl2_add_u32 s{G.sT}, s{G.sTB+(q&7)}, s{G.sWo}", "s")]
        if q >= 8:
            out.append(I(f"s_add_u32 s{G.sT}, s{G.sT}, 147456", "s"))
            out.append(I(f"s_cmp_eq_u32 s{G.sTASK}, 3\ns_cselect_b32 s{G.sT}, {OOB}, s{G.sT}", "s"))
        out.append(I(f"s_add_u32 m0, s{G.sLB}, {b + 4096}", "s"))
        out.append(I(f"s_lshr_b32 s{G.sT3}, s{G.sT}, 12\ns_mul_hi_u32 s{G.sT3}, s{G.sT3}, s97\ns_lshl_b32 s{G.sT3}, s{G.sT3}, 10", "s"))
        out.append(I(f"buffer_load_dwordx4 v{G.ODMA5}, {sr(S_WS)}, s{G.sT3} offen sc1 lds", "d", tag))
        for rg in range(4):
            out.append(I(f"s_add_u32 m0, s{G.sLB}, {b + rg*1024}", "s"))
            out.append(I(f"buffer_load_dwordx4 v{G.ODMA}, {sr(S_WO)}, s{G.sT} offen lds", "d", tag))
            if rg < 3:
                out.append(I(f"s_add_u32 s{G.sT}, s{G.sT}, {8*1152}", "s"))
        return out

    def loadB(i):
        if i < 4:
            return f"buffer_load_dwordx4 {vr(G.OBF+4*i)}, v{G.LB1}, {sr(S_WS)}, s{G.sT2} offen offset:{1024*i} sc1"
        if i == 4:
            return f"buffer_load_dwordx4 {vr(G.OBF+4*i)}, v{G.LB1b}, {sr(S_WS)}, s{G.sT2} offen sc1"
        return f"buffer_load_dwordx4 {vr(G.OBF+4*i)}, v{G.LB2}, {sr(S_WS)}, s{G.sT2} offen offset:{1024*(i-5)} sc1"

    def readsA(q):
        par = q & 1
        b = par * OSTB
        out = [f"ds_read_b64_tr_b16 {vr(G.OAF+20*par+4*j+2*u,2)}, v{G.OB+j} offset:{b + u*2048}"
               for j in range(4) for u in range(2)]
        out += [f"ds_read_b64_tr_b16 {vr(G.OAF+20*par+16+2*u,2)}, v{G.O5} offset:{b + 4096 + u*512}" for u in range(2)]
        return out

    e(f"s_lshl_b32 s{G.sT}, s{sBLK}, 7")
    e(f"v_mov_b32 v{G.T1}, s{G.sT}")
    e.label("L_O_init")
    e(f"s_sub_u32 s{sBUD}, s{sBUD}, 1")
    e("s_cbranch_scc1 L_bail")
    e(f"buffer_load_dword v{G.T0}, v{G.T1}, {sr(S_DBG)}, 0 offen sc1")
    e("s_waitcnt vmcnt(0)")
    e(f"v_cmp_gt_u32 vcc, 0x80, v{G.T0}")
    e("s_cbranch_vccnz L_O_init")
    for i in range(164):
        e(f"v_mov_b32 v{G.OACC+i}, 0")
    e(f"s_lshl_b32 s{G.sT}, s{sPAIR}, 3")
    e(f"s_lshl_b32 s{G.sT2}, s{sW}, 1")
    e(f"s_add_u32 s{G.sT}, s{G.sT}, s{G.sT2}")
    e(f"s_lshl_b32 s{G.sT}, s{G.sT}, 8")
    e(f"s_add_u32 s{G.sT}, s{G.sT}, {FLG}")
    e(f"v_and_b32 v14, 1, v0")
    e(f"v_lshlrev_b32 v14, 8, v14")
    e(f"v_add_u32 v14, s{G.sT}, v14")
    e(f"v_mov_b32 v{G.T2}, {LDS_FL+CL}")
    e(f"s_mov_b32 s{G.sT2}, 8")
    flag_wait(e, G.T0, G.T2, G.sT2, CP - CL + 65536 if False else 0, sleep=1) if False else None
    e(f"v_mov_b32 v15, {LDS_FL+CP}")
    flag_wait(e, G.T0, 15, G.sT2, 0, sleep=1)
    e.vm, e.lg = [], []
    run(dmaW(0, ("w", 0)))
    run(dmaW(1, ("w", 1)))
    e(f"buffer_load_dword v{G.T1}, v14, {sr(S_WS)}, 0 offen sc1", "poll")
    e.wait_vm(lambda t: t == ("w", 0))
    for x in readsA(0):
        e(x, ("a", 0))
    e("s_waitcnt lgkmcnt(0)")
    e.lg = []
    run(dmaW(2, ("w", 2)))
    e.wait_vm(lambda t: t == "poll")
    e(f"v_cmp_ge_u32 vcc, s{G.sTASK}, v{G.T1}")
    e("s_cbranch_vccz L_O_go")
    e.fence()
    e.raw(".p2align 6")
    e.label("L_O_task")
    if "serialO" in EXP:
        e(f"s_mov_b32 s{G.sT}, 4")
        flag_wait(e, G.T0, G.T2, G.sT, 0, sleep=4)
    e(f"s_add_u32 s{G.sT}, s{G.sTASK}, 1")
    flag_wait(e, G.T0, G.T2, G.sT, 0, sleep=4)
    if "wb" in EXP:
        lab = e.newlabel("nowb")
        e(f"s_cmp_lg_u32 s{sW}, 0")
        e(f"s_cbranch_scc1 {lab}")
        e("buffer_wbl2 sc1")
        e("s_waitcnt vmcnt(0)")
        e(f"s_lshl_b32 s{G.sT2}, s{sPAIR}, 3")
        e(f"s_add_u32 s{G.sT2}, s{G.sT2}, s{sJ}")
        e(f"s_lshl_b32 s{G.sT2}, s{G.sT2}, 8")
        e(f"s_add_u32 s{G.sT2}, s{G.sT2}, {FLG}")
        e(f"v_mov_b32 v{G.T0}, s{G.sT2}")
        e(f"v_mov_b32 v{G.T1}, s{G.sT}")
        e("s_mov_b64 exec, 1")
        e(f"buffer_store_dword v{G.T1}, v{G.T0}, {sr(S_WS)}, 0 offen sc1")
        e("s_mov_b64 exec, -1")
        e.label(lab)
    if "avoid" in EXP:
        lab = e.newlabel("avoid")
        e.label(lab)
        e("s_sleep 4")
        e(f"ds_read_b32 v{G.T0}, v{G.T2}")
        e("s_waitcnt lgkmcnt(0)")
        e(f"v_cmp_eq_u32 vcc, s{sW}, v{G.T0}")
        e(f"s_cbranch_vccnz {lab}")
    e.label("L_O_poll")
    e(f"s_sub_u32 s{sBUD}, s{sBUD}, 1")
    e("s_cbranch_scc1 L_bail")
    e(f"buffer_load_dword v{G.T0}, v14, {sr(S_WS)}, 0 offen sc1")
    e("s_waitcnt vmcnt(0)")
    e.vm = []
    e(f"v_cmp_gt_u32 vcc, s{G.sT}, v{G.T0}")
    e("s_cbranch_vccz L_O_go")
    e("s_sleep 8")
    e("s_branch L_O_poll")
    e.label("L_O_go")
    ts(e, G.T0, G.T1, True)
    e(f"ds_read_b32 v{G.T0}, v{G.T2}")
    e("s_waitcnt lgkmcnt(0)")
    e(f"v_cmp_eq_u32 vcc, 4, v{G.T0}")
    e("s_cbranch_vccnz L_O_free")
    for thr in (GTHO, 0):
        if thr != GTHO or GTHO == 0:
            e.label("L_O_free")
        e.vm = [("w", 1)] * 5 + [("w", 2)] * 5
        e(f"s_add_u32 s{G.sT2}, s{G.sO}, s{G.sTB}")
        e.throttle = thr
        if "fewreq" in EXP:
            e.nodma = ("v8,", "v6,")
        for i in range(9):
            Item(loadB(i), "d", tag=("b", 0, i)).emit(e)
        e.lg = [("a", 0)] * 10
        for q in range(8):
            par = q & 1
            M = []
            lastuse = {}
            for i in range(9):
                for n, j in enumerate([j for j in range(5) if (i, j) in acc]):
                    pre = None
                    if n == 0:
                        def pre(e, i=i, q=q):
                            if i == 0:
                                e.wait_lg(lambda t: t == ("a", q))
                            e.wait_vm(lambda t: t == ("b", q, i))
                    M.append((f"v_mfma_f32_16x16x32_bf16 {vr(acc[(i,j)])}, {vr(G.OAF+20*par+4*j)}, {vr(G.OBF+4*i)}, {vr(acc[(i,j)])}", pre))
                    lastuse[i] = len(M) - 1
            QB = []
            if q < 7:
                QB.append(Item(f"s_add_u32 s{G.sT2}, s{G.sO}, s{G.sTB+q+1}", "s", -1, 3))
                QB += [Item(loadB(i), "d", lastuse[i], tag=("b", q + 1, i)) for i in range(9)]
            QA = [Item(lambda e, q=q: e.wait_vm(lambda t: t == ("w", q + 1)), "s", 0)]
            QA += [Item(x, "l", 0, tag=("a", q + 1)) for x in readsA(q + 1)]
            QA += [Item(lambda e, q=q: e.wait_lg(lambda t: t == ("a", q + 1)), "s", 18)]
            if q == 6 and "early" in EXP:
                QA += [Item(f"buffer_load_dword v{G.T1}, v14, {sr(S_WS)}, 0 offen sc1", "d", 18, tag="poll")]
            QA += dmaW(q + 3, ("w", q + 3), 18)
            schedule(e, M, [QB, QA])
        e.wait_vm(lambda t: t == "poll")
        e.throttle = 0
        e.nodma = ""

        if GTHO == 0:
            break
        if thr == GTHO:
            e.branch("s_branch L_O_next")
    e.label("L_O_next")
    e(f"s_add_u32 s{G.sO}, s{G.sO}, 36864")
    e(f"s_add_u32 s{G.sWo}, s{G.sWo}, 147456")
    e(f"s_add_u32 s{G.sTASK}, s{G.sTASK}, 1")
    ts(e, G.T0, 15)
    e(f"s_cmp_eq_u32 s{G.sTASK}, 4")
    e.branch("s_cbranch_scc1 L_O_fin")
    if "early" in EXP:
        e(f"v_cmp_ge_u32 vcc, s{G.sTASK}, v{G.T1}")
        e("s_cbranch_vccz L_O_go")
    e.branch("s_branch L_O_task")
    e.label("L_O_fin")
    flag_wait(e, G.T0, G.T2, G.sTASK, 0, sleep=0)
    e("s_waitcnt vmcnt(0) lgkmcnt(0)")
    e.vm, e.lg = [], []
    e(f"v_lshlrev_b32 v{G.FLA}, 2, v0")
    e(f"v_add_u32 v{G.FLA}, {LDS_FL}, v{G.FLA}")
    e(f"v_mov_b32 v{G.BIG}, 0x7fffffff")
    RED, OST, R2_ = 8, 9, 10
    e(f"v_lshlrev_b32 v{RED}, 4, v0")
    e(f"v_and_b32 v{G.T0}, 15, v0")
    e(f"v_lshrrev_b32 v{G.T1}, 4, v0")
    e(f"v_mul_u32_u24 v{OST}, 2304, v{G.T0}")
    e(f"v_lshl_add_u32 v{OST}, v{G.T1}, 3, v{OST}")
    e(f"s_mul_i32 s{G.sT}, s{sB}, {144*2304}")
    e(f"s_mul_i32 s{G.sT2}, s{sBLK}, 1152")
    e(f"s_add_u32 s{G.sT}, s{G.sT}, s{G.sT2}")
    e(f"v_add_u32 v{OST}, s{G.sT}, v{OST}")
    e(f"s_mul_i32 s{G.sO}, s{G.sE}, {4*16*2304}")
    e(f"s_cmp_eq_u32 s{G.sE}, 0")
    e(f"s_cselect_b32 s{G.sWo}, {5*16*2304}, 0")
    e(f"s_lshl_b32 s{G.sCNT}, s{sJ}, 7")
    e(f"s_lshl_b32 s{G.sT3}, s{G.sP}, 5")
    e(f"v_add_u32 v{R2_}, 65536, v{RED}")
    e(f"v_add_u32 v11, 131072, v{RED}")
    for w in range(1, 4):
        e(f"s_cmp_eq_u32 s{sW}, {w}")
        e.branch(f"s_cbranch_scc1 L_red{w}")
    NTL = len(tiles)

    def slot(src, k):
        n = len([x for x in range(k) if x % 4 != src])
        if n < 16:
            return src * 16384 + n * 1024
        if n < 28:
            return LDS_R2 + src * 12288 + (n - 16) * 1024
        return LDS_OST + src * 11264 + (n - 28) * 1024
    assert LDS_R2 + 49152 <= LDS_FL

    def adr(a):
        return f"v{RED if a < 65536 else (R2_ if a < 131072 else 11)}", a & 0xffff

    for w in range(4):
        e.label(f"L_red{w}")
        e.hist = []
        e.lg = []
        for k, t in enumerate(tiles):
            if k % 4 != w:
                r_, o_ = adr(slot(w, k))
                e(f"ds_write_b128 {r_}, {vr(acc[t])} offset:{o_}")
        e("s_waitcnt lgkmcnt(0)")
        e.lg = []
        g_arrive(e)
        flag_wait(e, G.FL, G.FLA, G.sF, CG, sleep=0)
        own = [k for k in range(NTL) if k % 4 == w]
        free = [acc[tiles[k]] for k in range(NTL) if k % 4 != w]
        tmp = {}
        n = 0
        for k in own:
            for src in range(4):
                if src == w:
                    continue
                a = slot(src, k)
                r_ = free[n] if n < len(free) else G.OBF + 4 * (n - len(free))
                tmp[(k, src)] = r_
                n += 1
                ra, o_ = adr(a)
                e(f"ds_read_b128 {vr(r_)}, {ra} offset:{o_}", (k, src))
        for k in own:
            t = tiles[k]
            for src in range(4):
                if src == w:
                    continue
                e.wait_lg(lambda x: x == (k, src))
                for q in range(4):
                    e(f"v_add_f32 v{acc[t]+q}, v{acc[t]+q}, v{tmp[(k,src)]+q}")
            e(f"v_cvt_pk_bf16_f32 v{acc[t]}, v{acc[t]}, v{acc[t]+1}")
            e(f"v_cvt_pk_bf16_f32 v{acc[t]+1}, v{acc[t]+2}, v{acc[t]+3}")
            i, j = t
            if i < 5:
                e(f"s_add_u32 s{G.sT}, s{G.sO}, {i*16*2304}")
            else:
                e(f"s_add_u32 s{G.sT}, s{G.sWo}, {(i-5)*16*2304}")
            if j < 4:
                e(f"s_add_u32 s{G.sT}, s{G.sT}, s{G.sCNT}")
                off = 32 * j
            else:
                e(f"s_add_u32 s{G.sT}, s{G.sT}, s{G.sT3}")
                off = 1024
            e(f"buffer_store_dwordx2 {vr(acc[t],2)}, v{OST}, {sr(S_OUT)}, s{G.sT} offen offset:{off}")
        ts(e, G.T0, G.T1)
        e.branch("s_branch L_bail")
    for f in ool:
        f(e)


def main():
    e = E()
    e.throttle = 0
    e.raw(f"; @launch grid=(256,1,1) block=(512,1,1) lds={LDS_TOTAL}")
    e.raw('.amdgcn_target "amdgcn-amd-amdhsa--gfx950"\n.text')
    e.raw(f".globl {NAME}_kernel\n.p2align 8\n.type {NAME}_kernel,@function\n{NAME}_kernel:")
    prologue(e, "L_end")
    e("s_barrier")
    if "dbgt" in EXP:
        e("s_memrealtime s[20:21]")
        e("s_memtime s[22:23]")
        e("s_waitcnt lgkmcnt(0)")
    ts_init(e)
    ts(e, 1, 2)
    e(f"s_cmp_lt_u32 s{sWAVE}, 4")
    e.branch("s_cbranch_scc1 L_A")
    gen_G(e)
    e.label("L_A")
    e.hist = []
    gen_A(e)
    e.label("L_bail")
    e("s_waitcnt vmcnt(0) lgkmcnt(0)")
    if "dbgt" in EXP:
        e("s_memrealtime s[24:25]")
        e("s_memtime s[26:27]")
        e("s_waitcnt lgkmcnt(0)")
        e("s_cmp_lg_u32 s2, 77")
        e("s_cbranch_scc1 L_end")
        e("s_sub_u32 s24, s24, s20")
        e("s_sub_u32 s26, s26, s22")
        e(f"s_lshr_b32 s3, s{sWAVE}, 2")
        e("s_lshl_b32 s3, s3, 3")
        e("s_add_u32 s3, s3, 16")
        e("v_mov_b32 v1, s3")
        e("v_mov_b32 v2, s24")
        e("v_mov_b32 v3, s26")
        e(f"buffer_store_dwordx2 v[2:3], v1, {sr(S_DBG)}, 0 offen")
        e("s_waitcnt vmcnt(0)")
    e.label("L_end")
    e("s_endpgm")
    e.raw('.section .rodata,"a"')
    e.raw(f""".p2align 6
.amdhsa_kernel {NAME}_kernel
  .amdhsa_next_free_vgpr 256
  .amdhsa_next_free_sgpr 102
  .amdhsa_accum_offset 256
  .amdhsa_group_segment_fixed_size 0
  .amdhsa_kernarg_size 104
  .amdhsa_user_sgpr_count 2
  .amdhsa_user_sgpr_kernarg_segment_ptr 1
  .amdhsa_system_sgpr_workgroup_id_x 1
.end_amdhsa_kernel""")
    sys.stdout.write(e.text())
    print(f"instructions: {e.n_ins}, max vgpr {e.maxv}", file=sys.stderr)


if __name__ == "__main__":
    main()
```
